```python
import torch

def _softmax(x, axis=-1):
    return torch.softmax(x, dim=axis)
def _gelu(x):
    return torch.nn.functional.gelu(x, approximate="tanh")
def _silu(x):
    return torch.nn.functional.silu(x)
def _sigmoid(x):
    return torch.sigmoid(x)
def _layernorm(x, axis=-1, eps=1e-5):
    m = x.mean(dim=axis, keepdim=True)
    v = x.var(dim=axis, keepdim=True, unbiased=False)
    return (x - m) / torch.sqrt(v + eps)
def _scatter_add(tgt, idx, src, axis=0):
    return tgt.clone().index_add_(axis, idx, src)
def _segment_sum(src, seg, n):
    out = torch.zeros((n,) + src.shape[1:], dtype=src.dtype)
    return out.index_add_(0, seg, src)
def _pad(x, pw):
    flat = tuple(v for pair in reversed(pw) for v in pair)
    return torch.nn.functional.pad(x, flat)

kernel_name = 'standalone__normalfloat_lut_codebook_lookup__prompt'

def setup_inputs():

    _w = (lambda a: (lambda t: t.to(torch.bfloat16) if t.is_floating_point() else t)(torch.as_tensor(a)))
    B, S, D, F = 1, 2048, 576, 4608
    G = -1 if -1 > 0 else D
    D = (D // G) * G
    ng = D // G
    nf4 = torch.tensor([
        -1.0, -0.6961928009986877, -0.5250730514526367, -0.39491748809814453,
        -0.28444138169288635, -0.18477343022823334, -0.09105003625154495, 0.0,
        0.07958029955625534, 0.16093020141124725, 0.24611230194568634, 0.33791524171829224,
        0.44070982933044434, 0.5626170039176941, 0.7229568362236023, 1.0
    ], dtype=float)
    qw = torch.randint(0, 16, (D, F)).to(torch.int64)
    absmax = (torch.abs((lambda *s: torch.randn(*s, dtype=torch.bfloat16) * 0.05)(ng, F)) + 0.01).to(float)
    return {
        "x": _w((lambda *s: torch.randn(*s, dtype=torch.bfloat16) * 0.05)(B, S, D)),
        "qw": _w(qw),
        "codebook": _w(nf4),
        "absmax": _w(absmax),
    }

def reference(x, qw, codebook, absmax):
    B, S, D = x.shape
    ng, F = absmax.shape
    G = D // ng
    w_nf = codebook[qw]
    s = (lambda x, n, axis: torch.repeat_interleave(x, n, dim=axis))(absmax, G, axis=0)
    w = (lambda x, dt: x.to(dt))(w_nf * s, x.dtype)
    return torch.einsum("bsd,df->bsf", x, w)
```

```python
import sys
OPT = dict(stamps=0, prio=1, sc='', nomfma=0, nodeq=0, rotp=4, rots=1, qnt='', cst=0, noread=0, noepi=0, look=4, nxf=6, nowait=0)
for a in sys.argv[1:]:
    k, v = a.split('=')
    OPT[k] = int(v) if v.lstrip('-').isdigit() else v
NAME = 'standalone__normalfloat_lut_codebook_lookup__prompt_kernel'
out = []
def E(s): out.append('    ' + s)
def L(s): out.append(s + ':')
def C(s): out.append('    ; ' + s)

K, N, M = 576, 4608, 2048
QROW = N * 4
XRB = 16 * K * 2
ORB = 16 * N * 2
LUT = 92160
WST = LUT + 32768
LDS_TOTAL = WST + 32768
POS = [4, 0, 1, 5, 2, 3, 6, 7, 4, 0, 1]

S_X, S_Q, S_O, S_CB, S_AM = 16, 20, 24, 28, 32
S_STRIP, S_PART, S_RB0, S_NRB, S_WV = 36, 37, 38, 39, 40
S_OB = 41
S_T0, S_T1, S_T2, S_T3 = 42, 43, 54, 55
S_JJ = 44
S_XB, S_XL, S_H, S_RS = 52, 53, 56, 57
S_DBG = 60
S_ST = 62
S_ST0 = 64
S_SOFF = 66
S_POSL = 67

stamp_idx = [0]
def stamp(role):
    if not OPT['stamps']: return
    i = stamp_idx[0]; stamp_idx[0] += 1
    if i > 0:
        E(f's_sub_u32 s{S_ST}, s{S_ST}, s{S_ST0}')
        E(f'v_writelane_b32 v{VSTAMP}, s{S_ST}, {i-1}')
    E(f's_memtime s[{S_ST}:{S_ST+1}]')
def stamp_flush():
    if not OPT['stamps']: return
    i = stamp_idx[0]
    E('s_waitcnt lgkmcnt(0)')
    E(f's_sub_u32 s{S_ST}, s{S_ST}, s{S_ST0}')
    E(f'v_writelane_b32 v{VSTAMP}, s{S_ST}, {i-1}')
VSTAMP = 255

def header():
    out.append(f'; Kernarg: 0 x(1,2048,576) bf16 | 8 qw(576,4608) i32 | 16 codebook(16) bf16 | 24 absmax(1,4608) bf16 | 32 out | 40 debug | 48 ws')
    out.append(f'; @launch grid=(256,1,1) block=(512,1,1) lds={LDS_TOTAL}')
    out.append('.amdgcn_target "amdgcn-amd-amdhsa--gfx950"')
    out.append('.text')
    out.append(f'.globl {NAME}')
    out.append('.p2align 8')
    out.append(f'.type {NAME},@function')
    L(NAME)

def footer():
    out.append('.section .rodata,"a"')
    out.append('.p2align 6')
    out.append(f'.amdhsa_kernel {NAME}')
    for s in ['next_free_vgpr 256', 'next_free_sgpr 96', 'accum_offset 256', 'group_segment_fixed_size 0',
              'kernarg_size 56', 'user_sgpr_count 2', 'user_sgpr_kernarg_segment_ptr 1',
              'system_sgpr_workgroup_id_x 1']:
        out.append('  .amdhsa_' + s)
    out.append('.end_amdhsa_kernel')

def srd(d, p, nbytes):
    E(f's_mov_b32 s{d}, s{p}')
    E(f's_and_b32 s{d+1}, s{p+1}, 0xffff')
    E(f's_mov_b32 s{d+2}, {nbytes}')
    E(f's_mov_b32 s{d+3}, 0x20000')

def prologue():
    E('s_cmp_ge_u32 s2, 256')
    E('s_cbranch_scc1 L_end')
    E('s_load_dwordx4 s[4:7], s[0:1], 0')
    E('s_load_dwordx4 s[8:11], s[0:1], 16')
    E('s_load_dwordx2 s[12:13], s[0:1], 32')
    if OPT['stamps']:
        E(f's_load_dwordx2 s[{S_DBG}:{S_DBG+1}], s[0:1], 40')
        E(f's_memtime s[{S_ST0}:{S_ST0+1}]')
    E(f's_and_b32 s{S_T0}, s2, 7')
    E(f's_lshl_b32 s{S_T0}, s{S_T0}, 5')
    E(f's_lshr_b32 s{S_T1}, s2, 3')
    E(f's_add_u32 s{S_T0}, s{S_T0}, s{S_T1}')
    E(f's_cmp_ge_u32 s{S_T0}, 252')
    E('s_cbranch_scc1 L_end')
    E(f's_mul_i32 s{S_STRIP}, s{S_T0}, 293')
    E(f's_lshr_b32 s{S_STRIP}, s{S_STRIP}, 11')
    E(f's_mul_i32 s{S_T1}, s{S_STRIP}, 7')
    E(f's_sub_u32 s{S_PART}, s{S_T0}, s{S_T1}')
    E(f's_mul_i32 s{S_RB0}, s{S_PART}, 18')
    E(f's_min_u32 s{S_T1}, s{S_PART}, 2')
    E(f's_add_u32 s{S_RB0}, s{S_RB0}, s{S_T1}')
    E(f's_cmp_lt_u32 s{S_PART}, 2')
    E(f's_cselect_b32 s{S_NRB}, 19, 18')
    E('v_lshrrev_b32 v1, 6, v0')
    E('v_and_b32 v0, 63, v0')
    E(f'v_readfirstlane_b32 s{S_WV}, v1')
    if OPT['stamps']:
        E(f'v_mov_b32 v{VSTAMP}, 0')
    E('s_nop 3')
    E(f's_cmp_ge_u32 s{S_WV}, 4')
    E('s_cbranch_scc1 L_producer')

V_W = 0
V_ACC = 144
V_XF = 208
NXF = OPT['nxf']
V_SC = 232
V_TMP = 240
V_XA0, V_XA1, V_XC0, V_XC1, V_WA, V_OV = 248, 249, 250, 251, 252, 253
V_LN = 254
LOOK = OPT['look']

def Wreg(t, u, j): return V_W + ((t * 2 + u) * 2 + j) * 4
def ACC(s, j): return V_ACC + s * 8 + j * 4

def epilogue_instrs(s, rbrel, tmpsel):
    t = V_TMP + 4 * tmpsel
    ins = []
    if OPT['noepi']: return ins
    for r in range(4):
        for j in range(2):
            ins.append(f'v_mul_f32 v{ACC(s,j)+r}, v{ACC(s,j)+r}, v{V_SC+j}')
        ins.append(f'v_cvt_pk_bf16_f32 v{t+r}, v{ACC(s,0)+r}, v{ACC(s,1)+r}')
    for r in range(4):
        ins.append(f's_add_u32 s{S_SOFF}, s{S_OB}, {rbrel * ORB + r * N * 2}')
        ins.append(f'buffer_store_dword v{t+r}, v{V_OV}, s[{S_O}:{S_O+3}], s{S_SOFF} offen {OPT["sc"]}'.rstrip())
    return ins

def consumer():
    L('L_consumer')
    E(f'v_mov_b32 v{V_LN}, v0')
    E('s_waitcnt lgkmcnt(0)')
    srd(S_O, 12, M * N * 2)
    srd(S_CB, 8, 32)
    srd(S_AM, 10, N * 2)
    E(f'v_lshrrev_b32 v1, 3, v{V_LN}')
    E('v_lshlrev_b32 v1, 1, v1')
    E(f'buffer_load_ushort v2, v1, s[{S_CB}:{S_CB+3}], 0 offen')
    E(f'buffer_load_ushort v3, v1, s[{S_CB}:{S_CB+3}], 0 offen offset:16')
    E(f's_lshl_b32 s{S_T0}, s{S_WV}, 3')
    E(f's_add_u32 s8, s8, s{S_T0}')
    E(f's_addc_u32 s9, s9, 0')
    E(f's_load_dwordx2 s[{S_T2}:{S_T3}], s[8:9], 0')
    E(f'v_and_b32 v4, 15, v{V_LN}')
    E('v_lshlrev_b32 v4, 2, v4')
    E(f's_lshl_b32 s{S_T0}, s{S_STRIP}, 8')
    E(f's_lshl_b32 s{S_T1}, s{S_WV}, 6')
    E(f's_add_u32 s{S_T0}, s{S_T0}, s{S_T1}')
    E(f'buffer_load_dword v8, v4, s[{S_AM}:{S_AM+3}], s{S_T0} offen')
    E(f's_mul_i32 s{S_OB}, s{S_RB0}, {ORB}')
    E(f's_add_u32 s{S_OB}, s{S_OB}, s{S_T0}')
    E(f'v_and_b32 v5, 15, v{V_LN}')
    E(f'v_lshrrev_b32 v7, 4, v{V_LN}')
    E(f'v_mul_u32_u24 v{V_OV}, {4*N*2}, v7')
    E(f'v_add_u32 v{V_OV}, v{V_OV}, v4')
    E('v_lshrrev_b32 v6, 1, v5')
    E(f'v_lshrrev_b32 v7, 4, v{V_LN}')
    E('v_xor_b32 v6, v6, v7')
    E('v_lshlrev_b32 v6, 4, v6')
    E(f'v_lshl_add_u32 v{V_XA0}, v5, 7, v6')
    E(f'v_xor_b32 v{V_XA1}, 64, v{V_XA0}')
    E('v_lshrrev_b32 v6, 3, v5')
    E('v_xor_b32 v6, v6, v5')
    E('v_lshl_add_u32 v6, v7, 4, v6')
    E('v_lshlrev_b32 v6, 4, v6')
    E(f's_lshl_b32 s{S_T1}, s{S_WV}, 11')
    E(f's_add_u32 s{S_T1}, s{S_T1}, {WST}')
    E(f'v_add_u32 v{V_WA}, s{S_T1}, v6')
    E(f's_lshl_b32 s{S_T1}, s{S_WV}, 13')
    E(f's_add_u32 s{S_T1}, s{S_T1}, {LUT}')
    E(f'v_lshlrev_b32 v6, 4, v{V_LN}')
    E(f'v_add_u32 v6, s{S_T1}, v6')
    E('s_waitcnt vmcnt(0) lgkmcnt(0)')
    E(f's_lshl_b32 s68, s{S_T2}, 16')
    E(f's_and_b32 s69, s{S_T2}, 0xffff0000')
    E(f's_lshl_b32 s70, s{S_T3}, 16')
    E(f's_and_b32 s71, s{S_T3}, 0xffff0000')
    for i in range(8):
        src = 2 + (i & 1)
        base = 16 + 4 * (i & 1)
        for c in range(4):
            E(f'v_or_b32 v{base+c}, s{68 + (i >> 1)}, v{src}')
        E(f'ds_write_b128 v6, v[{base}:{base+3}] offset:{i*1024}')
    E(f'v_lshlrev_b32 v{V_SC}, 16, v8')
    E(f'v_and_b32 v{V_SC+1}, 0xffff0000, v8')
    E('s_waitcnt lgkmcnt(0)')
    E('s_barrier')
    if OPT['prio']: E(f's_setprio {OPT["prio"]}')
    stamp('c')

    stream = []
    for t in range(9):
        for rb in range(8):
            for u in range(2):
                stream.append(dict(rnd=t, base=(t % 5) * 16384, u=u, off=rb * 2048, t=t, wu=u, s=rb, first=(t == 0 and u == 0),
                                   ph=1, rb=rb, newround=(rb == 0 and u == 0)))
    P2 = 11
    for i in range(P2):
        for kc in range(9):
            for u in range(2):
                stream.append(dict(rnd=9 + i // 2, base=POS[i] * XRB, u=u, off=kc * 2048, t=kc, wu=u, s=i & 1,
                                   first=(kc == 0 and u == 0), ph=2, rb=8 + i, i=i,
                                   newround=(i % 2 == 0 and kc == 0 and u == 0), newrb=(kc == 0 and u == 0)))
    n_all = len(stream)
    for n, f in enumerate(stream): f['buf'] = V_XF + 4 * (n % NXF); f['n'] = n

    lg = []
    def issue_read(n):
        f = stream[n]
        if f['newround']:
            if f['ph'] == 1 or f['rnd'] == 9:
                E('s_waitcnt lgkmcnt(0)'); lg.clear()
            E('s_barrier')
            if f['rnd'] in (0, 4, 8, 9, 11, 13) or OPT['cst']: stamp('c')
            if f['ph'] == 1:
                t = f['t']
                for u in range(2):
                    for j in range(2):
                        r = Wreg(t, u, j)
                        E(f'ds_read_b128 v[{r}:{r+3}], v{V_WA} offset:{(t & 1) * 16384 + u * 8192 + j * 1024}')
                        lg.append(('W', t))
        if (f['ph'] == 1 and f['newround']) or (f['ph'] == 2 and f['newrb']):
            E(f'v_add_u32 v{V_XC0}, {f["base"]}, v{V_XA0}')
            E(f'v_add_u32 v{V_XC1}, {f["base"]}, v{V_XA1}')
        a = V_XC0 if f['u'] == 0 else V_XC1
        if OPT['noread']: return
        E(f'ds_read_b128 v[{f["buf"]}:{f["buf"]+3}], v{a} offset:{f["off"]}')
        lg.append(('X', n))
    def wait_for(n):
        idx = None
        for k, tag in enumerate(lg):
            if tag == ('X', n): idx = k
        if idx is None: return
        remain = len(lg) - idx - 1
        if not OPT['nowait']: E(f's_waitcnt lgkmcnt({min(remain, 15)})')
        del lg[:idx + 1]

    pending = []
    def emit_range(n0, n1):
        for n in range(n0, n1):
            f = stream[n]
            if n + LOOK < limit[0] and n + LOOK >= issued[0]:
                issue_read(n + LOOK); issued[0] = n + LOOK + 1
            wait_for(n)
            for j in range(2):
                a = ACC(f['s'], j); w = Wreg(f['t'], f['wu'], j)
                c = '0' if f['first'] else f'v[{a}:{a+3}]'
                if not OPT['nomfma']:
                    E(f'v_mfma_f32_16x16x32_bf16 v[{a}:{a+3}], v[{f["buf"]}:{f["buf"]+3}], v[{w}:{w+3}], {c}')
                for _ in range(f.get('npend', 1)):
                    if pending: E(pending.pop(0))
            if f['ph'] == 1 and f['t'] == 8 and f['u'] == 1 and f['rb'] >= 1:
                pending.extend(epilogue_instrs(f['rb'] - 1, f['rb'] - 1, (f['rb'] - 1) & 1))
            if f['ph'] == 2 and f['t'] == 1 and f['u'] == 0:
                i = f['i']
                if i == 0: pending.extend(epilogue_instrs(7, 7, 1))
                else: pending.extend(epilogue_instrs((i - 1) & 1, 8 + i - 1, i & 1))
    issued = [0]; limit = [0]
    for f in stream:
        if f['ph'] == 1 and f['t'] == 8: f['npend'] = 5
    n_p1 = 9 * 16
    n_10 = n_p1 + 10 * 18
    limit[0] = n_10
    for n in range(LOOK):
        issue_read(n); issued[0] = n + 1
    emit_range(0, n_10)
    E(f's_cmp_eq_u32 s{S_NRB}, 19')
    E('s_cbranch_scc0 L_c_fin18')
    save_pending = list(pending)
    save_lg = list(lg)
    limit[0] = n_all
    for n in range(n_10, n_10 + LOOK):
        issue_read(n); issued[0] = n + 1
    emit_range(n_10, n_all)
    while pending: E(pending.pop(0))
    E('s_nop 7')
    for s in epilogue_instrs(10 & 1, 18, 0): E(s)
    stamp('c')
    E('s_branch L_c_done')
    L('L_c_fin18')
    pending.extend(save_pending)
    while pending: E(pending.pop(0))
    E('s_nop 7')
    for s in epilogue_instrs(9 & 1, 17, 0): E(s)
    L('L_c_done')
    if OPT['stamps']:
        E('s_waitcnt vmcnt(0)')
        stamp('c')
        dump_stamps(0)
    E('s_endpgm')

def dump_stamps(role):
    stamp_flush()
    E('s_cmp_lg_u32 s2, 0')
    E(f's_cbranch_scc1 L_nost{role}')
    E(f's_cmp_lg_u32 s{S_WV}, {4*role}')
    E(f's_cbranch_scc1 L_nost{role}')
    E('v_mbcnt_lo_u32_b32 v1, -1, 0')
    E('v_mbcnt_hi_u32_b32 v1, -1, v1')
    E('v_lshlrev_b32 v1, 2, v1')
    E('v_cmp_gt_u32 vcc, 128, v1')
    E('s_and_saveexec_b64 s[70:71], vcc')
    E(f'global_store_dword v1, v{VSTAMP}, s[{S_DBG}:{S_DBG+1}] offset:{128*role}')
    E('s_waitcnt vmcnt(0)')
    L(f'L_nost{role}')

V_Q = 0
V_QV, V_XV, V_LB, V_WA0, V_WA1 = 128, 129, 130, 131, 132
P_LN = 133

S_XK = 72
S_WK = 81
V_QC = 134
def producer():
    L('L_producer')
    stamp_idx[0] = 0
    E(f'v_mov_b32 v{P_LN}, v0')
    E(f's_sub_u32 s{S_T0}, s{S_WV}, 4')
    E(f's_and_b32 s{S_H}, s{S_T0}, 1')
    E(f's_lshr_b32 s{S_RS}, s{S_T0}, 1')
    E(f's_mul_i32 s{S_T1}, s{S_PART}, {OPT["rotp"]}')
    E(f's_mul_i32 s{S_T2}, s{S_STRIP}, {OPT["rots"]}')
    E(f's_add_u32 s{S_T1}, s{S_T1}, s{S_T2}')
    E(f's_mul_i32 s{S_T2}, s{S_T1}, 7282')
    E(f's_lshr_b32 s{S_T2}, s{S_T2}, 16')
    E(f's_mul_i32 s{S_T2}, s{S_T2}, 9')
    E(f's_sub_u32 s{S_T1}, s{S_T1}, s{S_T2}')
    E(f's_add_u32 s{S_XB}, s{S_RB0}, s{S_RS}')
    E(f's_mul_i32 s{S_XB}, s{S_XB}, {XRB}')
    for t in range(9):
        E(f's_lshl_b32 s{S_T2}, s{S_T1}, 7')
        E(f's_add_u32 s{S_XK+t}, s{S_XB}, s{S_T2}')
        E(f's_mul_i32 s{S_WK+t}, s{S_T1}, {64*QROW}')
        if t < 8:
            E(f's_add_u32 s{S_T1}, s{S_T1}, 1')
            E(f's_cmp_eq_u32 s{S_T1}, 9')
            E(f's_cselect_b32 s{S_T1}, 0, s{S_T1}')
    E(f's_lshl_b32 s{S_T1}, s{S_T0}, 4')
    E(f's_mul_i32 s{S_T1}, s{S_T1}, {QROW}')
    E(f's_lshl_b32 s{S_T2}, s{S_STRIP}, 9')
    E(f's_add_u32 s{S_T1}, s{S_T1}, s{S_T2}')
    E(f'v_lshrrev_b32 v1, 5, v{P_LN}')
    E(f'v_mul_u32_u24 v2, {8*QROW}, v1')
    E(f'v_and_b32 v3, 31, v{P_LN}')
    E('v_lshl_add_u32 v2, v3, 4, v2')
    E(f'v_add_u32 v{V_QV}, s{S_T1}, v2')
    for jj in range(8):
        E(f's_mov_b32 s{S_JJ+jj}, {jj*QROW}')
    E(f'v_lshrrev_b32 v4, 3, v{P_LN}')
    E(f's_lshl_b32 s{S_T3}, s{S_H}, 3')
    E(f'v_add_u32 v4, s{S_T3}, v4')
    E('v_lshrrev_b32 v5, 1, v4')
    E(f'v_and_b32 v6, 7, v{P_LN}')
    E('v_xor_b32 v5, v5, v6')
    E('v_lshlrev_b32 v5, 4, v5')
    E(f'v_mul_u32_u24 v4, {K*2}, v4')
    E(f'v_add_u32 v{V_XV}, v4, v5')
    E(f's_lshl_b32 s{S_XL}, s{S_H}, 10')
    E(f's_lshl_b32 s{S_T3}, s{S_RS}, 11')
    E(f's_add_u32 s{S_XL}, s{S_XL}, s{S_T3}')
    E(f'v_add_u32 v{V_QC}, s{S_WK}, v{V_QV}')
    E('s_waitcnt lgkmcnt(0)')
    srd(S_Q, 6, K * N * 4)
    srd(S_X, 4, M * K * 2)

    def opsW(t):
        b = V_Q + 32 * (t & 3)
        g = []
        for jj in range(8):
            pre = []
            if jj == 0 and t > 0: pre = [f'v_add_u32 v{V_QC}, s{S_WK+t}, v{V_QV}']
            g.append(pre + [f'buffer_load_dwordx4 v[{b+4*jj}:{b+4*jj+3}], v{V_QC}, s[{S_Q}:{S_Q+3}], s{S_JJ+jj} offen {OPT["qnt"]}'.rstrip()])
        return g
    def opsX(t):
        g = []
        for z in range(4):
            g.append([f's_add_u32 m0, s{S_XL}, {(t % 5) * 16384 + z * 4096}',
                      f's_add_u32 s{S_SOFF}, s{S_XK+t}, {2 * z * XRB}',
                      f'buffer_load_dwordx4 v{V_XV}, s[{S_X}:{S_X+3}], s{S_SOFF} offen lds'])
        return g
    def opsG(t):
        w = opsW(t); x = opsX(t)
        g = []
        for z in range(4): g += [w[2*z], w[2*z+1], x[z]]
        return g
    def opsY(u):
        pa = POS[2 * u] * XRB
        pb = POS[2 * u + 1] * XRB if 2 * u + 1 < len(POS) else pa
        pre = [f's_mov_b32 s{S_POSL}, {pa}', f's_cmp_eq_u32 s{S_RS}, 0',
               f's_cselect_b32 s{S_POSL}, s{S_POSL}, {pb}', f's_lshl_b32 s{S_T3}, s{S_H}, 10',
               f's_add_u32 s{S_POSL}, s{S_POSL}, s{S_T3}']
        g = []
        for kc in range(9):
            g.append((pre if kc == 0 else []) + [f's_add_u32 m0, s{S_POSL}, {kc * 2048}',
                      f's_add_u32 s{S_SOFF}, s{S_XK+kc}, {(8 + 2 * u) * XRB}',
                      f'buffer_load_dwordx4 v{V_XV}, s[{S_X}:{S_X+3}], s{S_SOFF} offen lds'])
        return g
    def emit(groups):
        for g in groups:
            for s_ in g: E(s_)
    def deq_instrs(t):
        b = V_Q + 32 * (t & 3)
        ins = []
        if not OPT['nodeq']:
            for e in range(4):
                for d in range(4):
                    lo = b + 4 * (2 * d) + e; hi = b + 4 * (2 * d + 1) + e
                    ins.append(f'v_lshl_add_u32 v{lo}, v{lo}, 7, v{V_LB}')
                    ins.append(f'v_lshl_add_u32 v{lo}, v{hi}, 11, v{lo}')
            for e in range(4):
                for d in range(4):
                    lo = b + 4 * (2 * d) + e
                    ins.append(f'ds_read_b32 v{b + 4*(2*e+1) + d}, v{lo}')
        for e in range(4):
            r = b + 4 * (2 * e + 1)
            a = V_WA0 if (e >> 1) == 0 else V_WA1
            w = f'ds_write_b128 v{a}, v[{r}:{r+3}] offset:{(t & 1) * 16384 + (e & 1) * 1024}'
            if not OPT['nodeq']: ins.append(f's_waitcnt lgkmcnt({(3 - e) * 4 + e})')
            ins.append(w)
        return ins
    def interleave(groups, ins):
        n = len(groups)
        if n == 0:
            for s_ in ins: E(s_)
            return
        per = -(-len(ins) // n)
        k = 0
        for g in groups:
            for s_ in g: E(s_)
            for s_ in ins[k:k+per]: E(s_)
            k += per
        for s_ in ins[k:]: E(s_)

    emit(opsG(0))
    E(f'v_and_b32 v{V_LB}, 31, v{P_LN}')
    E(f'v_lshrrev_b32 v{V_WA1}, 3, v{V_LB}')
    E(f'v_and_b32 v{V_WA0}, 7, v{V_LB}')
    E(f'v_lshlrev_b32 v{V_LB}, 2, v{V_LB}')
    E(f'v_add_u32 v{V_LB}, {LUT}, v{V_LB}')
    T0, T1, T2 = 135, 136, 137
    E(f'v_lshlrev_b32 v{T0}, 1, v{V_WA0}')
    E(f'v_lshrrev_b32 v{T1}, 3, v{T0}')
    E(f'v_xor_b32 v{T0}, v{T0}, v{T1}')
    E(f's_lshl_b32 s{S_T3}, s{S_H}, 1')
    E(f'v_lshrrev_b32 v{T1}, 5, v{P_LN}')
    E(f'v_add_u32 v{T1}, s{S_T3}, v{T1}')
    E(f'v_lshl_add_u32 v{T0}, v{T1}, 4, v{T0}')
    E(f'v_lshlrev_b32 v{T0}, 4, v{T0}')
    E(f'v_lshl_add_u32 v{T0}, v{V_WA1}, 11, v{T0}')
    E(f's_lshl_b32 s{S_T3}, s{S_RS}, 13')
    E(f's_add_u32 s{S_T3}, s{S_T3}, {WST}')
    E(f'v_add_u32 v{V_WA0}, s{S_T3}, v{T0}')
    E(f'v_xor_b32 v{V_WA1}, 16, v{V_WA0}')
    emit(opsG(1))
    stamp('p')
    E('s_barrier')
    E('s_waitcnt vmcnt(12)')
    stamp('p')
    interleave(opsG(2), deq_instrs(0))
    E('s_waitcnt lgkmcnt(0)')
    E('s_barrier')
    stamp('p')
    for r in range(0, 8):
        if r + 2 <= 8: E('s_waitcnt vmcnt(12)')
        else: E('s_waitcnt vmcnt(0)')
        groups = []
        if r + 3 <= 8: groups = opsG(r + 3)
        if r == 7: groups = opsY(0)
        if OPT['cst']: stamp('p')
        interleave(groups, deq_instrs(r + 1))
        E('s_waitcnt lgkmcnt(0)')
        if OPT['cst']: stamp('p')
        E('s_barrier')
        if r in (3, 7) or OPT['cst']: stamp('p')
    emit(opsY(1)); E('s_waitcnt vmcnt(9)'); E('s_barrier'); stamp('p')
    emit(opsY(2)); emit(opsY(3)); E('s_waitcnt vmcnt(18)'); E('s_barrier')
    E('s_waitcnt vmcnt(9)'); E('s_barrier')
    emit(opsY(4)); E('s_waitcnt vmcnt(9)'); E('s_barrier')
    E(f's_cmp_eq_u32 s{S_NRB}, 19')
    E('s_cbranch_scc0 L_p_fin18')
    E(f's_cmp_eq_u32 s{S_RS}, 0')
    E('s_cbranch_scc0 L_p_noy5')
    emit(opsY(5))
    E('s_waitcnt vmcnt(9)')
    E('s_branch L_p_b13')
    L('L_p_noy5')
    E('s_waitcnt vmcnt(0)')
    L('L_p_b13')
    E('s_barrier')
    E('s_waitcnt vmcnt(0)')
    E('s_barrier')
    E('s_branch L_p_done')
    L('L_p_fin18')
    E('s_waitcnt vmcnt(0)')
    E('s_barrier')
    L('L_p_done')
    if OPT['stamps']:
        stamp('p')
        dump_stamps(1)
    E('s_endpgm')

header()
prologue()
consumer()
producer()
L('L_end')
E('s_endpgm')
footer()
print('\n'.join(out))
```

```python
import sys
OPT = dict(stamps=0, prio=1, sc='', nomfma=0, nodeq=0, rotp=4, rots=1, qnt='', cst=0, noread=0, noepi=0, look=4, nxf=6, nowait=0, pst=0)
for a in sys.argv[1:]:
    k, v = a.split('=')
    OPT[k] = int(v) if v.lstrip('-').isdigit() else v
NAME = 'standalone__normalfloat_lut_codebook_lookup__prompt_kernel'
out = []
def E(s): out.append('    ' + s)
def L(s): out.append(s + ':')
def C(s): out.append('    ; ' + s)

K, N, M = 576, 4608, 2048
QROW = N * 4
XRB = 16 * K * 2
ORB = 16 * N * 2
LUT = 92160
WST = LUT + 32768
LDS_TOTAL = WST + 32768
POS = [4, 0, 1, 5, 2, 3, 6, 7, 4, 0, 1]

S_X, S_Q, S_O, S_CB, S_AM = 16, 20, 24, 28, 32
S_STRIP, S_PART, S_RB0, S_NRB, S_WV = 36, 37, 38, 39, 40
S_OB = 41
S_T0, S_T1, S_T2, S_T3 = 42, 43, 54, 55
S_JJ = 44
S_XB, S_XL, S_H, S_RS = 52, 53, 56, 57
S_DBG = 60
S_ST = 62
S_ST0 = 64
S_SOFF = 66
S_POSL = 67

stamp_idx = [0]
def stamp(role, sync=False):
    if not OPT['stamps']: return
    i = stamp_idx[0]; stamp_idx[0] += 1
    if i > 0:
        E(f's_sub_u32 s{S_ST}, s{S_ST}, s{S_ST0}')
        E(f'v_writelane_b32 v{VSTAMP}, s{S_ST}, {i-1}')
    E(f's_memtime s[{S_ST}:{S_ST+1}]')
    if sync or role == 'p': E('s_waitcnt lgkmcnt(0)')
def stamp_flush():
    if not OPT['stamps']: return
    i = stamp_idx[0]
    E('s_waitcnt lgkmcnt(0)')
    E(f's_sub_u32 s{S_ST}, s{S_ST}, s{S_ST0}')
    E(f'v_writelane_b32 v{VSTAMP}, s{S_ST}, {i-1}')
VSTAMP = 255

def header():
    out.append(f'; Kernarg: 0 x(1,2048,576) bf16 | 8 qw(576,4608) i32 | 16 codebook(16) bf16 | 24 absmax(1,4608) bf16 | 32 out | 40 debug | 48 ws')
    out.append(f'; @launch grid=(256,1,1) block=(512,1,1) lds={LDS_TOTAL}')
    out.append('.amdgcn_target "amdgcn-amd-amdhsa--gfx950"')
    out.append('.text')
    out.append(f'.globl {NAME}')
    out.append('.p2align 8')
    out.append(f'.type {NAME},@function')
    L(NAME)

def footer():
    out.append('.section .rodata,"a"')
    out.append('.p2align 6')
    out.append(f'.amdhsa_kernel {NAME}')
    for s in ['next_free_vgpr 256', 'next_free_sgpr 96', 'accum_offset 256', 'group_segment_fixed_size 0',
              'kernarg_size 56', 'user_sgpr_count 2', 'user_sgpr_kernarg_segment_ptr 1',
              'system_sgpr_workgroup_id_x 1']:
        out.append('  .amdhsa_' + s)
    out.append('.end_amdhsa_kernel')

def srd(d, p, nbytes):
    E(f's_mov_b32 s{d}, s{p}')
    E(f's_and_b32 s{d+1}, s{p+1}, 0xffff')
    E(f's_mov_b32 s{d+2}, {nbytes}')
    E(f's_mov_b32 s{d+3}, 0x20000')

def prologue():
    E('s_cmp_ge_u32 s2, 256')
    E('s_cbranch_scc1 L_end')
    E('s_load_dwordx4 s[4:7], s[0:1], 0')
    E('s_load_dwordx4 s[8:11], s[0:1], 16')
    E('s_load_dwordx2 s[12:13], s[0:1], 32')
    if OPT['stamps']:
        E(f's_load_dwordx2 s[{S_DBG}:{S_DBG+1}], s[0:1], 40')
        E(f's_memtime s[{S_ST0}:{S_ST0+1}]')
    E(f's_and_b32 s{S_T0}, s2, 7')
    E(f's_lshl_b32 s{S_T0}, s{S_T0}, 5')
    E(f's_lshr_b32 s{S_T1}, s2, 3')
    E(f's_add_u32 s{S_T0}, s{S_T0}, s{S_T1}')
    E(f's_cmp_ge_u32 s{S_T0}, 252')
    E('s_cbranch_scc1 L_end')
    E(f's_mul_i32 s{S_STRIP}, s{S_T0}, 293')
    E(f's_lshr_b32 s{S_STRIP}, s{S_STRIP}, 11')
    E(f's_mul_i32 s{S_T1}, s{S_STRIP}, 7')
    E(f's_sub_u32 s{S_PART}, s{S_T0}, s{S_T1}')
    E(f's_mul_i32 s{S_RB0}, s{S_PART}, 18')
    E(f's_min_u32 s{S_T1}, s{S_PART}, 2')
    E(f's_add_u32 s{S_RB0}, s{S_RB0}, s{S_T1}')
    E(f's_cmp_lt_u32 s{S_PART}, 2')
    E(f's_cselect_b32 s{S_NRB}, 19, 18')
    E('v_lshrrev_b32 v1, 6, v0')
    E('v_and_b32 v0, 63, v0')
    E(f'v_readfirstlane_b32 s{S_WV}, v1')
    if OPT['stamps']:
        E(f'v_mov_b32 v{VSTAMP}, 0')
    E('s_nop 3')
    E(f's_cmp_ge_u32 s{S_WV}, 4')
    E('s_cbranch_scc1 L_producer')

V_W = 0
V_ACC = 144
V_XF = 208
NXF = OPT['nxf']
V_SC = 232
V_TMP = 240
V_XA0, V_XA1, V_XC0, V_XC1, V_WA, V_OV = 248, 249, 250, 251, 252, 253
V_LN = 254
LOOK = OPT['look']

def Wreg(t, u, j): return V_W + ((t * 2 + u) * 2 + j) * 4
def ACC(s, j): return V_ACC + s * 8 + j * 4

def epilogue_instrs(s, rbrel, tmpsel):
    t = V_TMP + 4 * tmpsel
    ins = []
    if OPT['noepi']: return ins
    for r in range(4):
        for j in range(2):
            ins.append(f'v_mul_f32 v{ACC(s,j)+r}, v{ACC(s,j)+r}, v{V_SC+j}')
        ins.append(f'v_cvt_pk_bf16_f32 v{t+r}, v{ACC(s,0)+r}, v{ACC(s,1)+r}')
    for r in range(4):
        ins.append(f's_add_u32 s{S_SOFF}, s{S_OB}, {rbrel * ORB + r * N * 2}')
        ins.append(f'buffer_store_dword v{t+r}, v{V_OV}, s[{S_O}:{S_O+3}], s{S_SOFF} offen {OPT["sc"]}'.rstrip())
    return ins

def consumer():
    L('L_consumer')
    E(f'v_mov_b32 v{V_LN}, v0')
    E('s_waitcnt lgkmcnt(0)')
    if OPT['pst']: stamp('c', True)
    srd(S_O, 12, M * N * 2)
    srd(S_CB, 8, 32)
    srd(S_AM, 10, N * 2)
    E(f'v_lshrrev_b32 v1, 3, v{V_LN}')
    E('v_lshlrev_b32 v1, 1, v1')
    E(f'buffer_load_ushort v2, v1, s[{S_CB}:{S_CB+3}], 0 offen')
    E(f'buffer_load_ushort v3, v1, s[{S_CB}:{S_CB+3}], 0 offen offset:16')
    E(f's_lshl_b32 s{S_T0}, s{S_WV}, 3')
    E(f's_add_u32 s8, s8, s{S_T0}')
    E(f's_addc_u32 s9, s9, 0')
    E(f's_load_dwordx2 s[{S_T2}:{S_T3}], s[8:9], 0')
    E(f'v_and_b32 v4, 15, v{V_LN}')
    E('v_lshlrev_b32 v4, 2, v4')
    E(f's_lshl_b32 s{S_T0}, s{S_STRIP}, 8')
    E(f's_lshl_b32 s{S_T1}, s{S_WV}, 6')
    E(f's_add_u32 s{S_T0}, s{S_T0}, s{S_T1}')
    E(f'buffer_load_dword v8, v4, s[{S_AM}:{S_AM+3}], s{S_T0} offen')
    E(f's_mul_i32 s{S_OB}, s{S_RB0}, {ORB}')
    E(f's_add_u32 s{S_OB}, s{S_OB}, s{S_T0}')
    E(f'v_and_b32 v5, 15, v{V_LN}')
    E(f'v_lshrrev_b32 v7, 4, v{V_LN}')
    E(f'v_mul_u32_u24 v{V_OV}, {4*N*2}, v7')
    E(f'v_add_u32 v{V_OV}, v{V_OV}, v4')
    E('v_lshrrev_b32 v6, 1, v5')
    E(f'v_lshrrev_b32 v7, 4, v{V_LN}')
    E('v_xor_b32 v6, v6, v7')
    E('v_lshlrev_b32 v6, 4, v6')
    E(f'v_lshl_add_u32 v{V_XA0}, v5, 7, v6')
    E(f'v_xor_b32 v{V_XA1}, 64, v{V_XA0}')
    E('v_lshrrev_b32 v6, 3, v5')
    E('v_xor_b32 v6, v6, v5')
    E('v_lshl_add_u32 v6, v7, 4, v6')
    E('v_lshlrev_b32 v6, 4, v6')
    E(f's_lshl_b32 s{S_T1}, s{S_WV}, 11')
    E(f's_add_u32 s{S_T1}, s{S_T1}, {WST}')
    E(f'v_add_u32 v{V_WA}, s{S_T1}, v6')
    E(f's_lshl_b32 s{S_T1}, s{S_WV}, 13')
    E(f's_add_u32 s{S_T1}, s{S_T1}, {LUT}')
    E(f'v_lshlrev_b32 v6, 4, v{V_LN}')
    E(f'v_add_u32 v6, s{S_T1}, v6')
    E('s_waitcnt vmcnt(0) lgkmcnt(0)')
    if OPT['pst']: stamp('c', True)
    E(f's_lshl_b32 s68, s{S_T2}, 16')
    E(f's_and_b32 s69, s{S_T2}, 0xffff0000')
    E(f's_lshl_b32 s70, s{S_T3}, 16')
    E(f's_and_b32 s71, s{S_T3}, 0xffff0000')
    for i in range(8):
        src = 2 + (i & 1)
        base = 16 + 4 * (i & 1)
        for c in range(4):
            E(f'v_or_b32 v{base+c}, s{68 + (i >> 1)}, v{src}')
        E(f'ds_write_b128 v6, v[{base}:{base+3}] offset:{i*1024}')
    E(f'v_lshlrev_b32 v{V_SC}, 16, v8')
    E(f'v_and_b32 v{V_SC+1}, 0xffff0000, v8')
    E('s_waitcnt lgkmcnt(0)')
    if OPT['pst']: stamp('c', True)
    E('s_barrier')
    if OPT['prio']: E(f's_setprio {OPT["prio"]}')
    stamp('c')

    stream = []
    for t in range(9):
        for rb in range(8):
            for u in range(2):
                stream.append(dict(rnd=t, base=(t % 5) * 16384, u=u, off=rb * 2048, t=t, wu=u, s=rb, first=(t == 0 and u == 0),
                                   ph=1, rb=rb, newround=(rb == 0 and u == 0)))
    P2 = 11
    for i in range(P2):
        for kc in range(9):
            for u in range(2):
                stream.append(dict(rnd=9 + i // 2, base=POS[i] * XRB, u=u, off=kc * 2048, t=kc, wu=u, s=i & 1,
                                   first=(kc == 0 and u == 0), ph=2, rb=8 + i, i=i,
                                   newround=(i % 2 == 0 and kc == 0 and u == 0), newrb=(kc == 0 and u == 0)))
    n_all = len(stream)
    for n, f in enumerate(stream): f['buf'] = V_XF + 4 * (n % NXF); f['n'] = n

    lg = []
    def issue_read(n):
        f = stream[n]
        if f['newround']:
            if f['ph'] == 1 or f['rnd'] == 9:
                E('s_waitcnt lgkmcnt(0)'); lg.clear()
            E('s_barrier')
            if f['rnd'] in (0, 4, 8, 9, 11, 13) or OPT['cst']: stamp('c')
            if f['ph'] == 1:
                t = f['t']
                for u in range(2):
                    for j in range(2):
                        r = Wreg(t, u, j)
                        E(f'ds_read_b128 v[{r}:{r+3}], v{V_WA} offset:{(t & 1) * 16384 + u * 8192 + j * 1024}')
                        lg.append(('W', t))
        if (f['ph'] == 1 and f['newround']) or (f['ph'] == 2 and f['newrb']):
            E(f'v_add_u32 v{V_XC0}, {f["base"]}, v{V_XA0}')
            E(f'v_add_u32 v{V_XC1}, {f["base"]}, v{V_XA1}')
        a = V_XC0 if f['u'] == 0 else V_XC1
        if OPT['noread']: return
        E(f'ds_read_b128 v[{f["buf"]}:{f["buf"]+3}], v{a} offset:{f["off"]}')
        lg.append(('X', n))
    def wait_for(n):
        idx = None
        for k, tag in enumerate(lg):
            if tag == ('X', n): idx = k
        if idx is None: return
        remain = len(lg) - idx - 1
        if not OPT['nowait']: E(f's_waitcnt lgkmcnt({min(remain, 15)})')
        del lg[:idx + 1]

    pending = []
    def emit_range(n0, n1):
        for n in range(n0, n1):
            f = stream[n]
            if n + LOOK < limit[0] and n + LOOK >= issued[0]:
                issue_read(n + LOOK); issued[0] = n + LOOK + 1
            wait_for(n)
            for j in range(2):
                a = ACC(f['s'], j); w = Wreg(f['t'], f['wu'], j)
                c = '0' if f['first'] else f'v[{a}:{a+3}]'
                if not OPT['nomfma']:
                    E(f'v_mfma_f32_16x16x32_bf16 v[{a}:{a+3}], v[{f["buf"]}:{f["buf"]+3}], v[{w}:{w+3}], {c}')
                for _ in range(f.get('npend', 1)):
                    if pending: E(pending.pop(0))
            if f['ph'] == 1 and f['t'] == 8 and f['u'] == 1 and f['rb'] >= 1:
                pending.extend(epilogue_instrs(f['rb'] - 1, f['rb'] - 1, (f['rb'] - 1) & 1))
            if f['ph'] == 2 and f['t'] == 1 and f['u'] == 0:
                i = f['i']
                if i == 0: pending.extend(epilogue_instrs(7, 7, 1))
                else: pending.extend(epilogue_instrs((i - 1) & 1, 8 + i - 1, i & 1))
    issued = [0]; limit = [0]
    for f in stream:
        if f['ph'] == 1 and f['t'] == 8: f['npend'] = 5
    n_p1 = 9 * 16
    n_10 = n_p1 + 10 * 18
    limit[0] = n_10
    for n in range(LOOK):
        issue_read(n); issued[0] = n + 1
    emit_range(0, n_10)
    E(f's_cmp_eq_u32 s{S_NRB}, 19')
    E('s_cbranch_scc0 L_c_fin18')
    save_pending = list(pending)
    save_lg = list(lg)
    limit[0] = n_all
    for n in range(n_10, n_10 + LOOK):
        issue_read(n); issued[0] = n + 1
    emit_range(n_10, n_all)
    while pending: E(pending.pop(0))
    E('s_nop 7')
    for s in epilogue_instrs(10 & 1, 18, 0): E(s)
    stamp('c')
    E('s_branch L_c_done')
    L('L_c_fin18')
    pending.extend(save_pending)
    while pending: E(pending.pop(0))
    E('s_nop 7')
    for s in epilogue_instrs(9 & 1, 17, 0): E(s)
    L('L_c_done')
    if OPT['stamps']:
        E('s_waitcnt vmcnt(0)')
        stamp('c')
        dump_stamps(0)
    E('s_endpgm')

def dump_stamps(role):
    stamp_flush()
    E('s_cmp_lg_u32 s2, 0')
    E(f's_cbranch_scc1 L_nost{role}')
    E(f's_cmp_lg_u32 s{S_WV}, {4*role}')
    E(f's_cbranch_scc1 L_nost{role}')
    E('v_mbcnt_lo_u32_b32 v1, -1, 0')
    E('v_mbcnt_hi_u32_b32 v1, -1, v1')
    E('v_lshlrev_b32 v1, 2, v1')
    E('v_cmp_gt_u32 vcc, 128, v1')
    E('s_and_saveexec_b64 s[70:71], vcc')
    E(f'global_store_dword v1, v{VSTAMP}, s[{S_DBG}:{S_DBG+1}] offset:{128*role}')
    E('s_waitcnt vmcnt(0)')
    L(f'L_nost{role}')

V_Q = 0
V_QV, V_XV, V_LB, V_WA0, V_WA1 = 128, 129, 130, 131, 132
P_LN = 133

S_XK = 72
S_WK = 81
V_QC = 134
def producer():
    L('L_producer')
    stamp_idx[0] = 0
    E(f'v_mov_b32 v{P_LN}, v0')
    E(f's_sub_u32 s{S_T0}, s{S_WV}, 4')
    E(f's_and_b32 s{S_H}, s{S_T0}, 1')
    E(f's_lshr_b32 s{S_RS}, s{S_T0}, 1')
    E(f's_mul_i32 s{S_T1}, s{S_PART}, {OPT["rotp"]}')
    E(f's_mul_i32 s{S_T2}, s{S_STRIP}, {OPT["rots"]}')
    E(f's_add_u32 s{S_T1}, s{S_T1}, s{S_T2}')
    E(f's_mul_i32 s{S_T2}, s{S_T1}, 7282')
    E(f's_lshr_b32 s{S_T2}, s{S_T2}, 16')
    E(f's_mul_i32 s{S_T2}, s{S_T2}, 9')
    E(f's_sub_u32 s{S_T1}, s{S_T1}, s{S_T2}')
    E(f's_add_u32 s{S_XB}, s{S_RB0}, s{S_RS}')
    E(f's_mul_i32 s{S_XB}, s{S_XB}, {XRB}')
    for t in range(9):
        E(f's_lshl_b32 s{S_T2}, s{S_T1}, 7')
        E(f's_add_u32 s{S_XK+t}, s{S_XB}, s{S_T2}')
        E(f's_mul_i32 s{S_WK+t}, s{S_T1}, {64*QROW}')
        if t < 8:
            E(f's_add_u32 s{S_T1}, s{S_T1}, 1')
            E(f's_cmp_eq_u32 s{S_T1}, 9')
            E(f's_cselect_b32 s{S_T1}, 0, s{S_T1}')
    E(f's_lshl_b32 s{S_T1}, s{S_T0}, 4')
    E(f's_mul_i32 s{S_T1}, s{S_T1}, {QROW}')
    E(f's_lshl_b32 s{S_T2}, s{S_STRIP}, 9')
    E(f's_add_u32 s{S_T1}, s{S_T1}, s{S_T2}')
    E(f'v_lshrrev_b32 v1, 5, v{P_LN}')
    E(f'v_mul_u32_u24 v2, {8*QROW}, v1')
    E(f'v_and_b32 v3, 31, v{P_LN}')
    E('v_lshl_add_u32 v2, v3, 4, v2')
    E(f'v_add_u32 v{V_QV}, s{S_T1}, v2')
    for jj in range(8):
        E(f's_mov_b32 s{S_JJ+jj}, {jj*QROW}')
    E(f'v_lshrrev_b32 v4, 3, v{P_LN}')
    E(f's_lshl_b32 s{S_T3}, s{S_H}, 3')
    E(f'v_add_u32 v4, s{S_T3}, v4')
    E('v_lshrrev_b32 v5, 1, v4')
    E(f'v_and_b32 v6, 7, v{P_LN}')
    E('v_xor_b32 v5, v5, v6')
    E('v_lshlrev_b32 v5, 4, v5')
    E(f'v_mul_u32_u24 v4, {K*2}, v4')
    E(f'v_add_u32 v{V_XV}, v4, v5')
    E(f's_lshl_b32 s{S_XL}, s{S_H}, 10')
    E(f's_lshl_b32 s{S_T3}, s{S_RS}, 11')
    E(f's_add_u32 s{S_XL}, s{S_XL}, s{S_T3}')
    E(f'v_add_u32 v{V_QC}, s{S_WK}, v{V_QV}')
    E('s_waitcnt lgkmcnt(0)')
    if OPT['pst']: stamp('p', True)
    srd(S_Q, 6, K * N * 4)
    srd(S_X, 4, M * K * 2)

    def opsW(t):
        b = V_Q + 32 * (t & 3)
        g = []
        for jj in range(8):
            pre = []
            if jj == 0 and t > 0: pre = [f'v_add_u32 v{V_QC}, s{S_WK+t}, v{V_QV}']
            g.append(pre + [f'buffer_load_dwordx4 v[{b+4*jj}:{b+4*jj+3}], v{V_QC}, s[{S_Q}:{S_Q+3}], s{S_JJ+jj} offen {OPT["qnt"]}'.rstrip()])
        return g
    def opsX(t):
        g = []
        for z in range(4):
            g.append([f's_add_u32 m0, s{S_XL}, {(t % 5) * 16384 + z * 4096}',
                      f's_add_u32 s{S_SOFF}, s{S_XK+t}, {2 * z * XRB}',
                      f'buffer_load_dwordx4 v{V_XV}, s[{S_X}:{S_X+3}], s{S_SOFF} offen lds'])
        return g
    def opsG(t):
        w = opsW(t); x = opsX(t)
        g = []
        for z in range(4): g += [w[2*z], w[2*z+1], x[z]]
        return g
    def opsY(u):
        pa = POS[2 * u] * XRB
        pb = POS[2 * u + 1] * XRB if 2 * u + 1 < len(POS) else pa
        pre = [f's_mov_b32 s{S_POSL}, {pa}', f's_cmp_eq_u32 s{S_RS}, 0',
               f's_cselect_b32 s{S_POSL}, s{S_POSL}, {pb}', f's_lshl_b32 s{S_T3}, s{S_H}, 10',
               f's_add_u32 s{S_POSL}, s{S_POSL}, s{S_T3}']
        g = []
        for kc in range(9):
            g.append((pre if kc == 0 else []) + [f's_add_u32 m0, s{S_POSL}, {kc * 2048}',
                      f's_add_u32 s{S_SOFF}, s{S_XK+kc}, {(8 + 2 * u) * XRB}',
                      f'buffer_load_dwordx4 v{V_XV}, s[{S_X}:{S_X+3}], s{S_SOFF} offen lds'])
        return g
    def emit(groups):
        for g in groups:
            for s_ in g: E(s_)
    def deq_instrs(t):
        b = V_Q + 32 * (t & 3)
        ins = []
        if not OPT['nodeq']:
            for e in range(4):
                for d in range(4):
                    lo = b + 4 * (2 * d) + e; hi = b + 4 * (2 * d + 1) + e
                    ins.append(f'v_lshl_add_u32 v{lo}, v{lo}, 7, v{V_LB}')
                    ins.append(f'v_lshl_add_u32 v{lo}, v{hi}, 11, v{lo}')
            for e in range(4):
                for d in range(4):
                    lo = b + 4 * (2 * d) + e
                    ins.append(f'ds_read_b32 v{b + 4*(2*e+1) + d}, v{lo}')
        for e in range(4):
            r = b + 4 * (2 * e + 1)
            a = V_WA0 if (e >> 1) == 0 else V_WA1
            w = f'ds_write_b128 v{a}, v[{r}:{r+3}] offset:{(t & 1) * 16384 + (e & 1) * 1024}'
            if not OPT['nodeq']: ins.append(f's_waitcnt lgkmcnt({(3 - e) * 4 + e})')
            ins.append(w)
        return ins
    def interleave(groups, ins):
        n = len(groups)
        if n == 0:
            for s_ in ins: E(s_)
            return
        per = -(-len(ins) // n)
        k = 0
        for g in groups:
            for s_ in g: E(s_)
            for s_ in ins[k:k+per]: E(s_)
            k += per
        for s_ in ins[k:]: E(s_)

    emit(opsG(0))
    if OPT['pst']: stamp('p', True)
    E(f'v_and_b32 v{V_LB}, 31, v{P_LN}')
    E(f'v_lshrrev_b32 v{V_WA1}, 3, v{V_LB}')
    E(f'v_and_b32 v{V_WA0}, 7, v{V_LB}')
    E(f'v_lshlrev_b32 v{V_LB}, 2, v{V_LB}')
    E(f'v_add_u32 v{V_LB}, {LUT}, v{V_LB}')
    T0, T1, T2 = 135, 136, 137
    E(f'v_lshlrev_b32 v{T0}, 1, v{V_WA0}')
    E(f'v_lshrrev_b32 v{T1}, 3, v{T0}')
    E(f'v_xor_b32 v{T0}, v{T0}, v{T1}')
    E(f's_lshl_b32 s{S_T3}, s{S_H}, 1')
    E(f'v_lshrrev_b32 v{T1}, 5, v{P_LN}')
    E(f'v_add_u32 v{T1}, s{S_T3}, v{T1}')
    E(f'v_lshl_add_u32 v{T0}, v{T1}, 4, v{T0}')
    E(f'v_lshlrev_b32 v{T0}, 4, v{T0}')
    E(f'v_lshl_add_u32 v{T0}, v{V_WA1}, 11, v{T0}')
    E(f's_lshl_b32 s{S_T3}, s{S_RS}, 13')
    E(f's_add_u32 s{S_T3}, s{S_T3}, {WST}')
    E(f'v_add_u32 v{V_WA0}, s{S_T3}, v{T0}')
    E(f'v_xor_b32 v{V_WA1}, 16, v{V_WA0}')
    emit(opsG(1))
    stamp('p')
    E('s_barrier')
    E('s_waitcnt vmcnt(12)')
    stamp('p')
    interleave(opsG(2), deq_instrs(0))
    E('s_waitcnt lgkmcnt(0)')
    E('s_barrier')
    stamp('p')
    for r in range(0, 8):
        if r + 2 <= 8: E('s_waitcnt vmcnt(12)')
        else: E('s_waitcnt vmcnt(0)')
        groups = []
        if r + 3 <= 8: groups = opsG(r + 3)
        if r == 7: groups = opsY(0)
        if OPT['cst']: stamp('p')
        interleave(groups, deq_instrs(r + 1))
        E('s_waitcnt lgkmcnt(0)')
        if OPT['cst']: stamp('p')
        E('s_barrier')
        if r in (3, 7) or OPT['cst']: stamp('p')
    emit(opsY(1)); E('s_waitcnt vmcnt(9)'); E('s_barrier'); stamp('p')
    emit(opsY(2)); emit(opsY(3)); E('s_waitcnt vmcnt(18)'); E('s_barrier')
    E('s_waitcnt vmcnt(9)'); E('s_barrier')
    emit(opsY(4)); E('s_waitcnt vmcnt(9)'); E('s_barrier')
    E(f's_cmp_eq_u32 s{S_NRB}, 19')
    E('s_cbranch_scc0 L_p_fin18')
    E(f's_cmp_eq_u32 s{S_RS}, 0')
    E('s_cbranch_scc0 L_p_noy5')
    emit(opsY(5))
    E('s_waitcnt vmcnt(9)')
    E('s_branch L_p_b13')
    L('L_p_noy5')
    E('s_waitcnt vmcnt(0)')
    L('L_p_b13')
    E('s_barrier')
    E('s_waitcnt vmcnt(0)')
    E('s_barrier')
    E('s_branch L_p_done')
    L('L_p_fin18')
    E('s_waitcnt vmcnt(0)')
    E('s_barrier')
    L('L_p_done')
    if OPT['stamps']:
        stamp('p')
        dump_stamps(1)
    E('s_endpgm')

header()
prologue()
consumer()
producer()
L('L_end')
E('s_endpgm')
footer()
print('\n'.join(out))
```

```python
import sys
OPT = dict(stamps=0, prio=1, sc='', nomfma=0, nodeq=0, rotp=4, rots=1, qnt='', cst=0, noread=0, noepi=0, look=4, nxf=6, nowait=0, pst=0, rep=1)
for a in sys.argv[1:]:
    k, v = a.split('=')
    OPT[k] = int(v) if v.lstrip('-').isdigit() else v
NAME = 'standalone__normalfloat_lut_codebook_lookup__prompt_kernel'
out = []
def E(s): out.append('    ' + s)
def L(s): out.append(s + ':')
def C(s): out.append('    ; ' + s)

K, N, M = 576, 4608, 2048
QROW = N * 4
XRB = 16 * K * 2
ORB = 16 * N * 2
LUT = 92160
WST = LUT + 32768
LDS_TOTAL = WST + 32768
POS = [4, 0, 1, 5, 2, 3, 6, 7, 4, 0, 1]

S_X, S_Q, S_O, S_CB, S_AM = 16, 20, 24, 28, 32
S_STRIP, S_PART, S_RB0, S_NRB, S_WV = 36, 37, 38, 39, 40
S_OB = 41
S_T0, S_T1, S_T2, S_T3 = 42, 43, 54, 55
S_JJ = 44
S_XB, S_XL, S_H, S_RS = 52, 53, 56, 57
S_DBG = 60
S_ST = 62
S_ST0 = 64
S_SOFF = 66
S_POSL = 67

stamp_idx = [0]
def stamp(role, sync=False):
    if not OPT['stamps']: return
    i = stamp_idx[0]; stamp_idx[0] += 1
    if i > 0:
        E(f's_sub_u32 s{S_ST}, s{S_ST}, s{S_ST0}')
        E(f'v_writelane_b32 v{VSTAMP}, s{S_ST}, {i-1}')
    E(f's_memtime s[{S_ST}:{S_ST+1}]')
    if sync or role == 'p': E('s_waitcnt lgkmcnt(0)')
def stamp_flush():
    if not OPT['stamps']: return
    i = stamp_idx[0]
    E('s_waitcnt lgkmcnt(0)')
    E(f's_sub_u32 s{S_ST}, s{S_ST}, s{S_ST0}')
    E(f'v_writelane_b32 v{VSTAMP}, s{S_ST}, {i-1}')
VSTAMP = 255

def header():
    out.append(f'; Kernarg: 0 x(1,2048,576) bf16 | 8 qw(576,4608) i32 | 16 codebook(16) bf16 | 24 absmax(1,4608) bf16 | 32 out | 40 debug | 48 ws')
    out.append(f'; @launch grid=(256,1,1) block=(512,1,1) lds={LDS_TOTAL}')
    out.append('.amdgcn_target "amdgcn-amd-amdhsa--gfx950"')
    out.append('.text')
    out.append(f'.globl {NAME}')
    out.append('.p2align 8')
    out.append(f'.type {NAME},@function')
    L(NAME)

def footer():
    out.append('.section .rodata,"a"')
    out.append('.p2align 6')
    out.append(f'.amdhsa_kernel {NAME}')
    for s in ['next_free_vgpr 256', 'next_free_sgpr 96', 'accum_offset 256', 'group_segment_fixed_size 0',
              'kernarg_size 56', 'user_sgpr_count 2', 'user_sgpr_kernarg_segment_ptr 1',
              'system_sgpr_workgroup_id_x 1']:
        out.append('  .amdhsa_' + s)
    out.append('.end_amdhsa_kernel')

def srd(d, p, nbytes):
    E(f's_mov_b32 s{d}, s{p}')
    E(f's_and_b32 s{d+1}, s{p+1}, 0xffff')
    E(f's_mov_b32 s{d+2}, {nbytes}')
    E(f's_mov_b32 s{d+3}, 0x20000')

def prologue():
    E('s_cmp_ge_u32 s2, 256')
    E('s_cbranch_scc1 L_end')
    if OPT['rep'] > 1:
        E('s_mov_b32 s90, 0')
        L('L_start')
    E('s_load_dwordx4 s[4:7], s[0:1], 0')
    E('s_load_dwordx4 s[8:11], s[0:1], 16')
    E('s_load_dwordx2 s[12:13], s[0:1], 32')
    if OPT['stamps']:
        E(f's_load_dwordx2 s[{S_DBG}:{S_DBG+1}], s[0:1], 40')
        E(f's_memtime s[{S_ST0}:{S_ST0+1}]')
    E(f's_and_b32 s{S_T0}, s2, 7')
    E(f's_lshl_b32 s{S_T0}, s{S_T0}, 5')
    E(f's_lshr_b32 s{S_T1}, s2, 3')
    E(f's_add_u32 s{S_T0}, s{S_T0}, s{S_T1}')
    E(f's_cmp_ge_u32 s{S_T0}, 252')
    E('s_cbranch_scc1 L_end')
    E(f's_mul_i32 s{S_STRIP}, s{S_T0}, 293')
    E(f's_lshr_b32 s{S_STRIP}, s{S_STRIP}, 11')
    E(f's_mul_i32 s{S_T1}, s{S_STRIP}, 7')
    E(f's_sub_u32 s{S_PART}, s{S_T0}, s{S_T1}')
    E(f's_mul_i32 s{S_RB0}, s{S_PART}, 18')
    E(f's_min_u32 s{S_T1}, s{S_PART}, 2')
    E(f's_add_u32 s{S_RB0}, s{S_RB0}, s{S_T1}')
    E(f's_cmp_lt_u32 s{S_PART}, 2')
    E(f's_cselect_b32 s{S_NRB}, 19, 18')
    E('v_lshrrev_b32 v1, 6, v0')
    E('v_and_b32 v0, 63, v0')
    E(f'v_readfirstlane_b32 s{S_WV}, v1')
    if OPT['stamps']:
        E(f'v_mov_b32 v{VSTAMP}, 0')
    E('s_nop 3')
    E(f's_cmp_ge_u32 s{S_WV}, 4')
    E('s_cbranch_scc1 L_producer')

V_W = 0
V_ACC = 144
V_XF = 208
NXF = OPT['nxf']
V_SC = 232
V_TMP = 240
V_XA0, V_XA1, V_XC0, V_XC1, V_WA, V_OV = 248, 249, 250, 251, 252, 253
V_LN = 254
LOOK = OPT['look']

def Wreg(t, u, j): return V_W + ((t * 2 + u) * 2 + j) * 4
def ACC(s, j): return V_ACC + s * 8 + j * 4

def epilogue_instrs(s, rbrel, tmpsel):
    t = V_TMP + 4 * tmpsel
    ins = []
    if OPT['noepi']: return ins
    for r in range(4):
        for j in range(2):
            ins.append(f'v_mul_f32 v{ACC(s,j)+r}, v{ACC(s,j)+r}, v{V_SC+j}')
        ins.append(f'v_cvt_pk_bf16_f32 v{t+r}, v{ACC(s,0)+r}, v{ACC(s,1)+r}')
    for r in range(4):
        ins.append(f's_add_u32 s{S_SOFF}, s{S_OB}, {rbrel * ORB + r * N * 2}')
        ins.append(f'buffer_store_dword v{t+r}, v{V_OV}, s[{S_O}:{S_O+3}], s{S_SOFF} offen {OPT["sc"]}'.rstrip())
    return ins

def consumer():
    L('L_consumer')
    E(f'v_mov_b32 v{V_LN}, v0')
    E('s_waitcnt lgkmcnt(0)')
    if OPT['pst']: stamp('c', True)
    srd(S_O, 12, M * N * 2)
    srd(S_CB, 8, 32)
    srd(S_AM, 10, N * 2)
    E(f'v_lshrrev_b32 v1, 3, v{V_LN}')
    E('v_lshlrev_b32 v1, 1, v1')
    E(f'buffer_load_ushort v2, v1, s[{S_CB}:{S_CB+3}], 0 offen')
    E(f'buffer_load_ushort v3, v1, s[{S_CB}:{S_CB+3}], 0 offen offset:16')
    E(f's_lshl_b32 s{S_T0}, s{S_WV}, 3')
    E(f's_add_u32 s8, s8, s{S_T0}')
    E(f's_addc_u32 s9, s9, 0')
    E(f's_load_dwordx2 s[{S_T2}:{S_T3}], s[8:9], 0')
    E(f'v_and_b32 v4, 15, v{V_LN}')
    E('v_lshlrev_b32 v4, 2, v4')
    E(f's_lshl_b32 s{S_T0}, s{S_STRIP}, 8')
    E(f's_lshl_b32 s{S_T1}, s{S_WV}, 6')
    E(f's_add_u32 s{S_T0}, s{S_T0}, s{S_T1}')
    E(f'buffer_load_dword v8, v4, s[{S_AM}:{S_AM+3}], s{S_T0} offen')
    E(f's_mul_i32 s{S_OB}, s{S_RB0}, {ORB}')
    E(f's_add_u32 s{S_OB}, s{S_OB}, s{S_T0}')
    E(f'v_and_b32 v5, 15, v{V_LN}')
    E(f'v_lshrrev_b32 v7, 4, v{V_LN}')
    E(f'v_mul_u32_u24 v{V_OV}, {4*N*2}, v7')
    E(f'v_add_u32 v{V_OV}, v{V_OV}, v4')
    E('v_lshrrev_b32 v6, 1, v5')
    E(f'v_lshrrev_b32 v7, 4, v{V_LN}')
    E('v_xor_b32 v6, v6, v7')
    E('v_lshlrev_b32 v6, 4, v6')
    E(f'v_lshl_add_u32 v{V_XA0}, v5, 7, v6')
    E(f'v_xor_b32 v{V_XA1}, 64, v{V_XA0}')
    E('v_lshrrev_b32 v6, 3, v5')
    E('v_xor_b32 v6, v6, v5')
    E('v_lshl_add_u32 v6, v7, 4, v6')
    E('v_lshlrev_b32 v6, 4, v6')
    E(f's_lshl_b32 s{S_T1}, s{S_WV}, 11')
    E(f's_add_u32 s{S_T1}, s{S_T1}, {WST}')
    E(f'v_add_u32 v{V_WA}, s{S_T1}, v6')
    E(f's_lshl_b32 s{S_T1}, s{S_WV}, 13')
    E(f's_add_u32 s{S_T1}, s{S_T1}, {LUT}')
    E(f'v_lshlrev_b32 v6, 4, v{V_LN}')
    E(f'v_add_u32 v6, s{S_T1}, v6')
    E('s_waitcnt vmcnt(0) lgkmcnt(0)')
    if OPT['pst']: stamp('c', True)
    E(f's_lshl_b32 s68, s{S_T2}, 16')
    E(f's_and_b32 s69, s{S_T2}, 0xffff0000')
    E(f's_lshl_b32 s70, s{S_T3}, 16')
    E(f's_and_b32 s71, s{S_T3}, 0xffff0000')
    for i in range(8):
        src = 2 + (i & 1)
        base = 16 + 4 * (i & 1)
        for c in range(4):
            E(f'v_or_b32 v{base+c}, s{68 + (i >> 1)}, v{src}')
        E(f'ds_write_b128 v6, v[{base}:{base+3}] offset:{i*1024}')
    E(f'v_lshlrev_b32 v{V_SC}, 16, v8')
    E(f'v_and_b32 v{V_SC+1}, 0xffff0000, v8')
    E('s_waitcnt lgkmcnt(0)')
    if OPT['pst']: stamp('c', True)
    E('s_barrier')
    if OPT['prio']: E(f's_setprio {OPT["prio"]}')
    stamp('c')

    stream = []
    for t in range(9):
        for rb in range(8):
            for u in range(2):
                stream.append(dict(rnd=t, base=(t % 5) * 16384, u=u, off=rb * 2048, t=t, wu=u, s=rb, first=(t == 0 and u == 0),
                                   ph=1, rb=rb, newround=(rb == 0 and u == 0)))
    P2 = 11
    for i in range(P2):
        for kc in range(9):
            for u in range(2):
                stream.append(dict(rnd=9 + i // 2, base=POS[i] * XRB, u=u, off=kc * 2048, t=kc, wu=u, s=i & 1,
                                   first=(kc == 0 and u == 0), ph=2, rb=8 + i, i=i,
                                   newround=(i % 2 == 0 and kc == 0 and u == 0), newrb=(kc == 0 and u == 0)))
    n_all = len(stream)
    for n, f in enumerate(stream): f['buf'] = V_XF + 4 * (n % NXF); f['n'] = n

    lg = []
    def issue_read(n):
        f = stream[n]
        if f['newround']:
            if f['ph'] == 1 or f['rnd'] == 9:
                E('s_waitcnt lgkmcnt(0)'); lg.clear()
            E('s_barrier')
            if f['rnd'] in (0, 4, 8, 9, 11, 13) or OPT['cst']: stamp('c')
            if f['ph'] == 1:
                t = f['t']
                for u in range(2):
                    for j in range(2):
                        r = Wreg(t, u, j)
                        E(f'ds_read_b128 v[{r}:{r+3}], v{V_WA} offset:{(t & 1) * 16384 + u * 8192 + j * 1024}')
                        lg.append(('W', t))
        if (f['ph'] == 1 and f['newround']) or (f['ph'] == 2 and f['newrb']):
            E(f'v_add_u32 v{V_XC0}, {f["base"]}, v{V_XA0}')
            E(f'v_add_u32 v{V_XC1}, {f["base"]}, v{V_XA1}')
        a = V_XC0 if f['u'] == 0 else V_XC1
        if OPT['noread']: return
        E(f'ds_read_b128 v[{f["buf"]}:{f["buf"]+3}], v{a} offset:{f["off"]}')
        lg.append(('X', n))
    def wait_for(n):
        idx = None
        for k, tag in enumerate(lg):
            if tag == ('X', n): idx = k
        if idx is None: return
        remain = len(lg) - idx - 1
        if not OPT['nowait']: E(f's_waitcnt lgkmcnt({min(remain, 15)})')
        del lg[:idx + 1]

    pending = []
    def emit_range(n0, n1):
        for n in range(n0, n1):
            f = stream[n]
            if n + LOOK < limit[0] and n + LOOK >= issued[0]:
                issue_read(n + LOOK); issued[0] = n + LOOK + 1
            wait_for(n)
            for j in range(2):
                a = ACC(f['s'], j); w = Wreg(f['t'], f['wu'], j)
                c = '0' if f['first'] else f'v[{a}:{a+3}]'
                if not OPT['nomfma']:
                    E(f'v_mfma_f32_16x16x32_bf16 v[{a}:{a+3}], v[{f["buf"]}:{f["buf"]+3}], v[{w}:{w+3}], {c}')
                for _ in range(f.get('npend', 1)):
                    if pending: E(pending.pop(0))
            if f['ph'] == 1 and f['t'] == 8 and f['u'] == 1 and f['rb'] >= 1:
                pending.extend(epilogue_instrs(f['rb'] - 1, f['rb'] - 1, (f['rb'] - 1) & 1))
            if f['ph'] == 2 and f['t'] == 1 and f['u'] == 0:
                i = f['i']
                if i == 0: pending.extend(epilogue_instrs(7, 7, 1))
                else: pending.extend(epilogue_instrs((i - 1) & 1, 8 + i - 1, i & 1))
    issued = [0]; limit = [0]
    for f in stream:
        if f['ph'] == 1 and f['t'] == 8: f['npend'] = 5
    n_p1 = 9 * 16
    n_10 = n_p1 + 10 * 18
    limit[0] = n_10
    for n in range(LOOK):
        issue_read(n); issued[0] = n + 1
    emit_range(0, n_10)
    E(f's_cmp_eq_u32 s{S_NRB}, 19')
    E('s_cbranch_scc0 L_c_fin18')
    save_pending = list(pending)
    save_lg = list(lg)
    limit[0] = n_all
    for n in range(n_10, n_10 + LOOK):
        issue_read(n); issued[0] = n + 1
    emit_range(n_10, n_all)
    while pending: E(pending.pop(0))
    E('s_nop 7')
    for s in epilogue_instrs(10 & 1, 18, 0): E(s)
    stamp('c')
    E('s_branch L_c_done')
    L('L_c_fin18')
    pending.extend(save_pending)
    while pending: E(pending.pop(0))
    E('s_nop 7')
    for s in epilogue_instrs(9 & 1, 17, 0): E(s)
    L('L_c_done')
    if OPT['stamps']:
        E('s_waitcnt vmcnt(0)')
        stamp('c')
        dump_stamps(0)
    rep_tail(V_LN)
    E('s_endpgm')

def rep_tail(ln):
    if OPT['rep'] <= 1: return
    E('s_waitcnt vmcnt(0) lgkmcnt(0)')
    E('s_barrier')
    E('s_add_u32 s90, s90, 1')
    E(f's_lshl_b32 s91, s{S_WV}, 6')
    E(f'v_add_u32 v0, s91, v{ln}')
    E('s_setprio 0')
    E(f's_cmp_lt_u32 s90, {OPT["rep"]}')
    E('s_cbranch_scc1 L_start')

def dump_stamps(role):
    stamp_flush()
    E('s_cmp_lg_u32 s2, 0')
    E(f's_cbranch_scc1 L_nost{role}')
    E(f's_cmp_lg_u32 s{S_WV}, {4*role}')
    E(f's_cbranch_scc1 L_nost{role}')
    E('v_mbcnt_lo_u32_b32 v1, -1, 0')
    E('v_mbcnt_hi_u32_b32 v1, -1, v1')
    E('v_lshlrev_b32 v1, 2, v1')
    E('v_cmp_gt_u32 vcc, 128, v1')
    E('s_and_saveexec_b64 s[70:71], vcc')
    E(f'global_store_dword v1, v{VSTAMP}, s[{S_DBG}:{S_DBG+1}] offset:{128*role}')
    E('s_waitcnt vmcnt(0)')
    L(f'L_nost{role}')

V_Q = 0
V_QV, V_XV, V_LB, V_WA0, V_WA1 = 128, 129, 130, 131, 132
P_LN = 133

S_XK = 72
S_WK = 81
V_QC = 134
def producer():
    L('L_producer')
    stamp_idx[0] = 0
    E(f'v_mov_b32 v{P_LN}, v0')
    E(f's_sub_u32 s{S_T0}, s{S_WV}, 4')
    E(f's_and_b32 s{S_H}, s{S_T0}, 1')
    E(f's_lshr_b32 s{S_RS}, s{S_T0}, 1')
    E(f's_mul_i32 s{S_T1}, s{S_PART}, {OPT["rotp"]}')
    E(f's_mul_i32 s{S_T2}, s{S_STRIP}, {OPT["rots"]}')
    E(f's_add_u32 s{S_T1}, s{S_T1}, s{S_T2}')
    E(f's_mul_i32 s{S_T2}, s{S_T1}, 7282')
    E(f's_lshr_b32 s{S_T2}, s{S_T2}, 16')
    E(f's_mul_i32 s{S_T2}, s{S_T2}, 9')
    E(f's_sub_u32 s{S_T1}, s{S_T1}, s{S_T2}')
    E(f's_add_u32 s{S_XB}, s{S_RB0}, s{S_RS}')
    E(f's_mul_i32 s{S_XB}, s{S_XB}, {XRB}')
    for t in range(9):
        E(f's_lshl_b32 s{S_T2}, s{S_T1}, 7')
        E(f's_add_u32 s{S_XK+t}, s{S_XB}, s{S_T2}')
        E(f's_mul_i32 s{S_WK+t}, s{S_T1}, {64*QROW}')
        if t < 8:
            E(f's_add_u32 s{S_T1}, s{S_T1}, 1')
            E(f's_cmp_eq_u32 s{S_T1}, 9')
            E(f's_cselect_b32 s{S_T1}, 0, s{S_T1}')
    E(f's_lshl_b32 s{S_T1}, s{S_T0}, 4')
    E(f's_mul_i32 s{S_T1}, s{S_T1}, {QROW}')
    E(f's_lshl_b32 s{S_T2}, s{S_STRIP}, 9')
    E(f's_add_u32 s{S_T1}, s{S_T1}, s{S_T2}')
    E(f'v_lshrrev_b32 v1, 5, v{P_LN}')
    E(f'v_mul_u32_u24 v2, {8*QROW}, v1')
    E(f'v_and_b32 v3, 31, v{P_LN}')
    E('v_lshl_add_u32 v2, v3, 4, v2')
    E(f'v_add_u32 v{V_QV}, s{S_T1}, v2')
    for jj in range(8):
        E(f's_mov_b32 s{S_JJ+jj}, {jj*QROW}')
    E(f'v_lshrrev_b32 v4, 3, v{P_LN}')
    E(f's_lshl_b32 s{S_T3}, s{S_H}, 3')
    E(f'v_add_u32 v4, s{S_T3}, v4')
    E('v_lshrrev_b32 v5, 1, v4')
    E(f'v_and_b32 v6, 7, v{P_LN}')
    E('v_xor_b32 v5, v5, v6')
    E('v_lshlrev_b32 v5, 4, v5')
    E(f'v_mul_u32_u24 v4, {K*2}, v4')
    E(f'v_add_u32 v{V_XV}, v4, v5')
    E(f's_lshl_b32 s{S_XL}, s{S_H}, 10')
    E(f's_lshl_b32 s{S_T3}, s{S_RS}, 11')
    E(f's_add_u32 s{S_XL}, s{S_XL}, s{S_T3}')
    E(f'v_add_u32 v{V_QC}, s{S_WK}, v{V_QV}')
    E('s_waitcnt lgkmcnt(0)')
    if OPT['pst']: stamp('p', True)
    srd(S_Q, 6, K * N * 4)
    srd(S_X, 4, M * K * 2)

    def opsW(t):
        b = V_Q + 32 * (t & 3)
        g = []
        for jj in range(8):
            pre = []
            if jj == 0 and t > 0: pre = [f'v_add_u32 v{V_QC}, s{S_WK+t}, v{V_QV}']
            g.append(pre + [f'buffer_load_dwordx4 v[{b+4*jj}:{b+4*jj+3}], v{V_QC}, s[{S_Q}:{S_Q+3}], s{S_JJ+jj} offen {OPT["qnt"]}'.rstrip()])
        return g
    def opsX(t):
        g = []
        for z in range(4):
            g.append([f's_add_u32 m0, s{S_XL}, {(t % 5) * 16384 + z * 4096}',
                      f's_add_u32 s{S_SOFF}, s{S_XK+t}, {2 * z * XRB}',
                      f'buffer_load_dwordx4 v{V_XV}, s[{S_X}:{S_X+3}], s{S_SOFF} offen lds'])
        return g
    def opsG(t):
        w = opsW(t); x = opsX(t)
        g = []
        for z in range(4): g += [w[2*z], w[2*z+1], x[z]]
        return g
    def opsY(u):
        pa = POS[2 * u] * XRB
        pb = POS[2 * u + 1] * XRB if 2 * u + 1 < len(POS) else pa
        pre = [f's_mov_b32 s{S_POSL}, {pa}', f's_cmp_eq_u32 s{S_RS}, 0',
               f's_cselect_b32 s{S_POSL}, s{S_POSL}, {pb}', f's_lshl_b32 s{S_T3}, s{S_H}, 10',
               f's_add_u32 s{S_POSL}, s{S_POSL}, s{S_T3}']
        g = []
        for kc in range(9):
            g.append((pre if kc == 0 else []) + [f's_add_u32 m0, s{S_POSL}, {kc * 2048}',
                      f's_add_u32 s{S_SOFF}, s{S_XK+kc}, {(8 + 2 * u) * XRB}',
                      f'buffer_load_dwordx4 v{V_XV}, s[{S_X}:{S_X+3}], s{S_SOFF} offen lds'])
        return g
    def emit(groups):
        for g in groups:
            for s_ in g: E(s_)
    def deq_instrs(t):
        b = V_Q + 32 * (t & 3)
        ins = []
        if not OPT['nodeq']:
            for e in range(4):
                for d in range(4):
                    lo = b + 4 * (2 * d) + e; hi = b + 4 * (2 * d + 1) + e
                    ins.append(f'v_lshl_add_u32 v{lo}, v{lo}, 7, v{V_LB}')
                    ins.append(f'v_lshl_add_u32 v{lo}, v{hi}, 11, v{lo}')
            for e in range(4):
                for d in range(4):
                    lo = b + 4 * (2 * d) + e
                    ins.append(f'ds_read_b32 v{b + 4*(2*e+1) + d}, v{lo}')
        for e in range(4):
            r = b + 4 * (2 * e + 1)
            a = V_WA0 if (e >> 1) == 0 else V_WA1
            w = f'ds_write_b128 v{a}, v[{r}:{r+3}] offset:{(t & 1) * 16384 + (e & 1) * 1024}'
            if not OPT['nodeq']: ins.append(f's_waitcnt lgkmcnt({(3 - e) * 4 + e})')
            ins.append(w)
        return ins
    def interleave(groups, ins):
        n = len(groups)
        if n == 0:
            for s_ in ins: E(s_)
            return
        per = -(-len(ins) // n)
        k = 0
        for g in groups:
            for s_ in g: E(s_)
            for s_ in ins[k:k+per]: E(s_)
            k += per
        for s_ in ins[k:]: E(s_)

    emit(opsG(0))
    if OPT['pst']: stamp('p', True)
    E(f'v_and_b32 v{V_LB}, 31, v{P_LN}')
    E(f'v_lshrrev_b32 v{V_WA1}, 3, v{V_LB}')
    E(f'v_and_b32 v{V_WA0}, 7, v{V_LB}')
    E(f'v_lshlrev_b32 v{V_LB}, 2, v{V_LB}')
    E(f'v_add_u32 v{V_LB}, {LUT}, v{V_LB}')
    T0, T1, T2 = 135, 136, 137
    E(f'v_lshlrev_b32 v{T0}, 1, v{V_WA0}')
    E(f'v_lshrrev_b32 v{T1}, 3, v{T0}')
    E(f'v_xor_b32 v{T0}, v{T0}, v{T1}')
    E(f's_lshl_b32 s{S_T3}, s{S_H}, 1')
    E(f'v_lshrrev_b32 v{T1}, 5, v{P_LN}')
    E(f'v_add_u32 v{T1}, s{S_T3}, v{T1}')
    E(f'v_lshl_add_u32 v{T0}, v{T1}, 4, v{T0}')
    E(f'v_lshlrev_b32 v{T0}, 4, v{T0}')
    E(f'v_lshl_add_u32 v{T0}, v{V_WA1}, 11, v{T0}')
    E(f's_lshl_b32 s{S_T3}, s{S_RS}, 13')
    E(f's_add_u32 s{S_T3}, s{S_T3}, {WST}')
    E(f'v_add_u32 v{V_WA0}, s{S_T3}, v{T0}')
    E(f'v_xor_b32 v{V_WA1}, 16, v{V_WA0}')
    emit(opsG(1))
    stamp('p')
    E('s_barrier')
    E('s_waitcnt vmcnt(12)')
    stamp('p')
    interleave(opsG(2), deq_instrs(0))
    E('s_waitcnt lgkmcnt(0)')
    E('s_barrier')
    stamp('p')
    for r in range(0, 8):
        if r + 2 <= 8: E('s_waitcnt vmcnt(12)')
        else: E('s_waitcnt vmcnt(0)')
        groups = []
        if r + 3 <= 8: groups = opsG(r + 3)
        if r == 7: groups = opsY(0)
        if OPT['cst']: stamp('p')
        interleave(groups, deq_instrs(r + 1))
        E('s_waitcnt lgkmcnt(0)')
        if OPT['cst']: stamp('p')
        E('s_barrier')
        if r in (3, 7) or OPT['cst']: stamp('p')
    emit(opsY(1)); E('s_waitcnt vmcnt(9)'); E('s_barrier'); stamp('p')
    emit(opsY(2)); emit(opsY(3)); E('s_waitcnt vmcnt(18)'); E('s_barrier')
    E('s_waitcnt vmcnt(9)'); E('s_barrier')
    emit(opsY(4)); E('s_waitcnt vmcnt(9)'); E('s_barrier')
    E(f's_cmp_eq_u32 s{S_NRB}, 19')
    E('s_cbranch_scc0 L_p_fin18')
    E(f's_cmp_eq_u32 s{S_RS}, 0')
    E('s_cbranch_scc0 L_p_noy5')
    emit(opsY(5))
    E('s_waitcnt vmcnt(9)')
    E('s_branch L_p_b13')
    L('L_p_noy5')
    E('s_waitcnt vmcnt(0)')
    L('L_p_b13')
    E('s_barrier')
    E('s_waitcnt vmcnt(0)')
    E('s_barrier')
    E('s_branch L_p_done')
    L('L_p_fin18')
    E('s_waitcnt vmcnt(0)')
    E('s_barrier')
    L('L_p_done')
    if OPT['stamps']:
        stamp('p')
        dump_stamps(1)
    rep_tail(P_LN)
    E('s_endpgm')

header()
prologue()
consumer()
producer()
L('L_end')
E('s_endpgm')
footer()
print('\n'.join(out))
```

```python
import sys
OPT = dict(stamps=0, prio=1, sc='', nomfma=0, nodeq=0, rotp=4, rots=1, qnt='', cst=0, noread=0, noepi=0, look=4, nxf=6, nowait=0, pst=0, rep=1)
for a in sys.argv[1:]:
    k, v = a.split('=')
    OPT[k] = int(v) if v.lstrip('-').isdigit() else v
NAME = 'standalone__normalfloat_lut_codebook_lookup__prompt_kernel'
out = []
def E(s): out.append('    ' + s)
def L(s): out.append(s + ':')
def C(s): out.append('    ; ' + s)

K, N, M = 576, 4608, 2048
QROW = N * 4
XRB = 16 * K * 2
ORB = 16 * N * 2
LUT = 92160
WST = LUT + 32768
LDS_TOTAL = WST + 32768
POS = [4, 0, 1, 5, 2, 3, 6, 7, 4, 0, 1]

S_X, S_Q, S_O, S_CB, S_AM = 16, 20, 24, 28, 32
S_STRIP, S_PART, S_RB0, S_NRB, S_WV = 36, 37, 38, 39, 40
S_OB = 41
S_T0, S_T1, S_T2, S_T3 = 42, 43, 54, 55
S_JJ = 44
S_XB, S_XL, S_H, S_RS = 52, 53, 56, 57
S_DBG = 60
S_ST = 62
S_ST0 = 64
S_SOFF = 66
S_POSL = 67

stamp_idx = [0]
def stamp(role, sync=False):
    if not OPT['stamps']: return
    i = stamp_idx[0]; stamp_idx[0] += 1
    if i > 0:
        E(f's_sub_u32 s{S_ST}, s{S_ST}, s{S_ST0}')
        E(f'v_writelane_b32 v{VSTAMP}, s{S_ST}, {i-1}')
    E(f's_memtime s[{S_ST}:{S_ST+1}]')
    if sync or role == 'p': E('s_waitcnt lgkmcnt(0)')
def stamp_flush():
    if not OPT['stamps']: return
    i = stamp_idx[0]
    E('s_waitcnt lgkmcnt(0)')
    E(f's_sub_u32 s{S_ST}, s{S_ST}, s{S_ST0}')
    E(f'v_writelane_b32 v{VSTAMP}, s{S_ST}, {i-1}')
VSTAMP = 255

def header():
    out.append(f'; Kernarg: 0 x(1,2048,576) bf16 | 8 qw(576,4608) i32 | 16 codebook(16) bf16 | 24 absmax(1,4608) bf16 | 32 out | 40 debug | 48 ws')
    out.append(f'; @launch grid=(256,1,1) block=(512,1,1) lds={LDS_TOTAL}')
    out.append('.amdgcn_target "amdgcn-amd-amdhsa--gfx950"')
    out.append('.text')
    out.append(f'.globl {NAME}')
    out.append('.p2align 8')
    out.append(f'.type {NAME},@function')
    L(NAME)

def footer():
    out.append('.section .rodata,"a"')
    out.append('.p2align 6')
    out.append(f'.amdhsa_kernel {NAME}')
    for s in ['next_free_vgpr 256', 'next_free_sgpr 96', 'accum_offset 256', 'group_segment_fixed_size 0',
              'kernarg_size 56', 'user_sgpr_count 2', 'user_sgpr_kernarg_segment_ptr 1',
              'system_sgpr_workgroup_id_x 1']:
        out.append('  .amdhsa_' + s)
    out.append('.end_amdhsa_kernel')

def srd(d, p, nbytes):
    E(f's_mov_b32 s{d}, s{p}')
    E(f's_and_b32 s{d+1}, s{p+1}, 0xffff')
    E(f's_mov_b32 s{d+2}, {nbytes}')
    E(f's_mov_b32 s{d+3}, 0x20000')

def prologue():
    E('s_cmp_ge_u32 s2, 256')
    E('s_cbranch_scc1 L_end')
    if OPT['rep'] > 1:
        E('s_mov_b32 s90, 0')
        L('L_start')
    E('s_load_dwordx4 s[4:7], s[0:1], 0')
    E('s_load_dwordx4 s[8:11], s[0:1], 16')
    E('s_load_dwordx2 s[12:13], s[0:1], 32')
    if OPT['stamps']:
        E(f's_load_dwordx2 s[{S_DBG}:{S_DBG+1}], s[0:1], 40')
        E(f's_memtime s[{S_ST0}:{S_ST0+1}]')
        E('s_memrealtime s[94:95]')
    E(f's_and_b32 s{S_T0}, s2, 7')
    E(f's_lshl_b32 s{S_T0}, s{S_T0}, 5')
    E(f's_lshr_b32 s{S_T1}, s2, 3')
    E(f's_add_u32 s{S_T0}, s{S_T0}, s{S_T1}')
    E(f's_cmp_ge_u32 s{S_T0}, 252')
    E('s_cbranch_scc1 L_end')
    E(f's_mul_i32 s{S_STRIP}, s{S_T0}, 293')
    E(f's_lshr_b32 s{S_STRIP}, s{S_STRIP}, 11')
    E(f's_mul_i32 s{S_T1}, s{S_STRIP}, 7')
    E(f's_sub_u32 s{S_PART}, s{S_T0}, s{S_T1}')
    E(f's_mul_i32 s{S_RB0}, s{S_PART}, 18')
    E(f's_min_u32 s{S_T1}, s{S_PART}, 2')
    E(f's_add_u32 s{S_RB0}, s{S_RB0}, s{S_T1}')
    E(f's_cmp_lt_u32 s{S_PART}, 2')
    E(f's_cselect_b32 s{S_NRB}, 19, 18')
    E('v_lshrrev_b32 v1, 6, v0')
    E('v_and_b32 v0, 63, v0')
    E(f'v_readfirstlane_b32 s{S_WV}, v1')
    if OPT['stamps']:
        E(f'v_mov_b32 v{VSTAMP}, 0')
    E('s_nop 3')
    E(f's_cmp_ge_u32 s{S_WV}, 4')
    E('s_cbranch_scc1 L_producer')

V_W = 0
V_ACC = 144
V_XF = 208
NXF = OPT['nxf']
V_SC = 232
V_TMP = 240
V_XA0, V_XA1, V_XC0, V_XC1, V_WA, V_OV = 248, 249, 250, 251, 252, 253
V_LN = 254
LOOK = OPT['look']

def Wreg(t, u, j): return V_W + ((t * 2 + u) * 2 + j) * 4
def ACC(s, j): return V_ACC + s * 8 + j * 4

def epilogue_instrs(s, rbrel, tmpsel):
    t = V_TMP + 4 * tmpsel
    ins = []
    if OPT['noepi']: return ins
    for r in range(4):
        for j in range(2):
            ins.append(f'v_mul_f32 v{ACC(s,j)+r}, v{ACC(s,j)+r}, v{V_SC+j}')
        ins.append(f'v_cvt_pk_bf16_f32 v{t+r}, v{ACC(s,0)+r}, v{ACC(s,1)+r}')
    for r in range(4):
        ins.append(f's_add_u32 s{S_SOFF}, s{S_OB}, {rbrel * ORB + r * N * 2}')
        ins.append(f'buffer_store_dword v{t+r}, v{V_OV}, s[{S_O}:{S_O+3}], s{S_SOFF} offen {OPT["sc"]}'.rstrip())
    return ins

def consumer():
    L('L_consumer')
    E(f'v_mov_b32 v{V_LN}, v0')
    E('s_waitcnt lgkmcnt(0)')
    if OPT['pst']: stamp('c', True)
    srd(S_O, 12, M * N * 2)
    srd(S_CB, 8, 32)
    srd(S_AM, 10, N * 2)
    E(f'v_lshrrev_b32 v1, 3, v{V_LN}')
    E('v_lshlrev_b32 v1, 1, v1')
    E(f'buffer_load_ushort v2, v1, s[{S_CB}:{S_CB+3}], 0 offen')
    E(f'buffer_load_ushort v3, v1, s[{S_CB}:{S_CB+3}], 0 offen offset:16')
    E(f's_lshl_b32 s{S_T0}, s{S_WV}, 3')
    E(f's_add_u32 s8, s8, s{S_T0}')
    E(f's_addc_u32 s9, s9, 0')
    E(f's_load_dwordx2 s[{S_T2}:{S_T3}], s[8:9], 0')
    E(f'v_and_b32 v4, 15, v{V_LN}')
    E('v_lshlrev_b32 v4, 2, v4')
    E(f's_lshl_b32 s{S_T0}, s{S_STRIP}, 8')
    E(f's_lshl_b32 s{S_T1}, s{S_WV}, 6')
    E(f's_add_u32 s{S_T0}, s{S_T0}, s{S_T1}')
    E(f'buffer_load_dword v8, v4, s[{S_AM}:{S_AM+3}], s{S_T0} offen')
    E(f's_mul_i32 s{S_OB}, s{S_RB0}, {ORB}')
    E(f's_add_u32 s{S_OB}, s{S_OB}, s{S_T0}')
    E(f'v_and_b32 v5, 15, v{V_LN}')
    E(f'v_lshrrev_b32 v7, 4, v{V_LN}')
    E(f'v_mul_u32_u24 v{V_OV}, {4*N*2}, v7')
    E(f'v_add_u32 v{V_OV}, v{V_OV}, v4')
    E('v_lshrrev_b32 v6, 1, v5')
    E(f'v_lshrrev_b32 v7, 4, v{V_LN}')
    E('v_xor_b32 v6, v6, v7')
    E('v_lshlrev_b32 v6, 4, v6')
    E(f'v_lshl_add_u32 v{V_XA0}, v5, 7, v6')
    E(f'v_xor_b32 v{V_XA1}, 64, v{V_XA0}')
    E('v_lshrrev_b32 v6, 3, v5')
    E('v_xor_b32 v6, v6, v5')
    E('v_lshl_add_u32 v6, v7, 4, v6')
    E('v_lshlrev_b32 v6, 4, v6')
    E(f's_lshl_b32 s{S_T1}, s{S_WV}, 11')
    E(f's_add_u32 s{S_T1}, s{S_T1}, {WST}')
    E(f'v_add_u32 v{V_WA}, s{S_T1}, v6')
    E(f's_lshl_b32 s{S_T1}, s{S_WV}, 13')
    E(f's_add_u32 s{S_T1}, s{S_T1}, {LUT}')
    E(f'v_lshlrev_b32 v6, 4, v{V_LN}')
    E(f'v_add_u32 v6, s{S_T1}, v6')
    E('s_waitcnt vmcnt(0) lgkmcnt(0)')
    if OPT['pst']: stamp('c', True)
    E(f's_lshl_b32 s68, s{S_T2}, 16')
    E(f's_and_b32 s69, s{S_T2}, 0xffff0000')
    E(f's_lshl_b32 s70, s{S_T3}, 16')
    E(f's_and_b32 s71, s{S_T3}, 0xffff0000')
    for i in range(8):
        src = 2 + (i & 1)
        base = 16 + 4 * (i & 1)
        for c in range(4):
            E(f'v_or_b32 v{base+c}, s{68 + (i >> 1)}, v{src}')
        E(f'ds_write_b128 v6, v[{base}:{base+3}] offset:{i*1024}')
    E(f'v_lshlrev_b32 v{V_SC}, 16, v8')
    E(f'v_and_b32 v{V_SC+1}, 0xffff0000, v8')
    E('s_waitcnt lgkmcnt(0)')
    if OPT['pst']: stamp('c', True)
    E('s_barrier')
    if OPT['prio']: E(f's_setprio {OPT["prio"]}')
    stamp('c')

    stream = []
    for t in range(9):
        for rb in range(8):
            for u in range(2):
                stream.append(dict(rnd=t, base=(t % 5) * 16384, u=u, off=rb * 2048, t=t, wu=u, s=rb, first=(t == 0 and u == 0),
                                   ph=1, rb=rb, newround=(rb == 0 and u == 0)))
    P2 = 11
    for i in range(P2):
        for kc in range(9):
            for u in range(2):
                stream.append(dict(rnd=9 + i // 2, base=POS[i] * XRB, u=u, off=kc * 2048, t=kc, wu=u, s=i & 1,
                                   first=(kc == 0 and u == 0), ph=2, rb=8 + i, i=i,
                                   newround=(i % 2 == 0 and kc == 0 and u == 0), newrb=(kc == 0 and u == 0)))
    n_all = len(stream)
    for n, f in enumerate(stream): f['buf'] = V_XF + 4 * (n % NXF); f['n'] = n

    lg = []
    def issue_read(n):
        f = stream[n]
        if f['newround']:
            if f['ph'] == 1 or f['rnd'] == 9:
                E('s_waitcnt lgkmcnt(0)'); lg.clear()
            E('s_barrier')
            if f['rnd'] in (0, 4, 8, 9, 11, 13) or OPT['cst']: stamp('c')
            if f['ph'] == 1:
                t = f['t']
                for u in range(2):
                    for j in range(2):
                        r = Wreg(t, u, j)
                        E(f'ds_read_b128 v[{r}:{r+3}], v{V_WA} offset:{(t & 1) * 16384 + u * 8192 + j * 1024}')
                        lg.append(('W', t))
        if (f['ph'] == 1 and f['newround']) or (f['ph'] == 2 and f['newrb']):
            E(f'v_add_u32 v{V_XC0}, {f["base"]}, v{V_XA0}')
            E(f'v_add_u32 v{V_XC1}, {f["base"]}, v{V_XA1}')
        a = V_XC0 if f['u'] == 0 else V_XC1
        if OPT['noread']: return
        E(f'ds_read_b128 v[{f["buf"]}:{f["buf"]+3}], v{a} offset:{f["off"]}')
        lg.append(('X', n))
    def wait_for(n):
        idx = None
        for k, tag in enumerate(lg):
            if tag == ('X', n): idx = k
        if idx is None: return
        remain = len(lg) - idx - 1
        if not OPT['nowait']: E(f's_waitcnt lgkmcnt({min(remain, 15)})')
        del lg[:idx + 1]

    pending = []
    def emit_range(n0, n1):
        for n in range(n0, n1):
            f = stream[n]
            if n + LOOK < limit[0] and n + LOOK >= issued[0]:
                issue_read(n + LOOK); issued[0] = n + LOOK + 1
            wait_for(n)
            for j in range(2):
                a = ACC(f['s'], j); w = Wreg(f['t'], f['wu'], j)
                c = '0' if f['first'] else f'v[{a}:{a+3}]'
                if not OPT['nomfma']:
                    E(f'v_mfma_f32_16x16x32_bf16 v[{a}:{a+3}], v[{f["buf"]}:{f["buf"]+3}], v[{w}:{w+3}], {c}')
                for _ in range(f.get('npend', 1)):
                    if pending: E(pending.pop(0))
            if f['ph'] == 1 and f['t'] == 8 and f['u'] == 1 and f['rb'] >= 1:
                pending.extend(epilogue_instrs(f['rb'] - 1, f['rb'] - 1, (f['rb'] - 1) & 1))
            if f['ph'] == 2 and f['t'] == 1 and f['u'] == 0:
                i = f['i']
                if i == 0: pending.extend(epilogue_instrs(7, 7, 1))
                else: pending.extend(epilogue_instrs((i - 1) & 1, 8 + i - 1, i & 1))
    issued = [0]; limit = [0]
    for f in stream:
        if f['ph'] == 1 and f['t'] == 8: f['npend'] = 5
    n_p1 = 9 * 16
    n_10 = n_p1 + 10 * 18
    limit[0] = n_10
    for n in range(LOOK):
        issue_read(n); issued[0] = n + 1
    emit_range(0, n_10)
    E(f's_cmp_eq_u32 s{S_NRB}, 19')
    E('s_cbranch_scc0 L_c_fin18')
    save_pending = list(pending)
    save_lg = list(lg)
    limit[0] = n_all
    for n in range(n_10, n_10 + LOOK):
        issue_read(n); issued[0] = n + 1
    emit_range(n_10, n_all)
    while pending: E(pending.pop(0))
    E('s_nop 7')
    for s in epilogue_instrs(10 & 1, 18, 0): E(s)
    stamp('c')
    E('s_branch L_c_done')
    L('L_c_fin18')
    pending.extend(save_pending)
    while pending: E(pending.pop(0))
    E('s_nop 7')
    for s in epilogue_instrs(9 & 1, 17, 0): E(s)
    L('L_c_done')
    if OPT['stamps']:
        E('s_waitcnt vmcnt(0)')
        stamp('c')
        dump_stamps(0)
    rep_tail(V_LN)
    E('s_endpgm')

def rep_tail(ln):
    if OPT['rep'] <= 1: return
    E('s_waitcnt vmcnt(0) lgkmcnt(0)')
    E('s_barrier')
    E('s_add_u32 s90, s90, 1')
    E(f's_lshl_b32 s91, s{S_WV}, 6')
    E(f'v_add_u32 v0, s91, v{ln}')
    E('s_setprio 0')
    E(f's_cmp_lt_u32 s90, {OPT["rep"]}')
    E('s_cbranch_scc1 L_start')

def dump_stamps(role):
    stamp_flush()
    E('s_memrealtime s[92:93]')
    E('s_waitcnt lgkmcnt(0)')
    E('s_sub_u32 s92, s92, s94')
    E(f'v_writelane_b32 v{VSTAMP}, s92, {15 if not OPT["cst"] else 31}')
    E('s_cmp_lg_u32 s2, 0')
    E(f's_cbranch_scc1 L_nost{role}')
    E(f's_cmp_lg_u32 s{S_WV}, {4*role}')
    E(f's_cbranch_scc1 L_nost{role}')
    E('v_mbcnt_lo_u32_b32 v1, -1, 0')
    E('v_mbcnt_hi_u32_b32 v1, -1, v1')
    E('v_lshlrev_b32 v1, 2, v1')
    E('v_cmp_gt_u32 vcc, 128, v1')
    E('s_and_saveexec_b64 s[70:71], vcc')
    E(f'global_store_dword v1, v{VSTAMP}, s[{S_DBG}:{S_DBG+1}] offset:{128*role}')
    E('s_waitcnt vmcnt(0)')
    L(f'L_nost{role}')

V_Q = 0
V_QV, V_XV, V_LB, V_WA0, V_WA1 = 128, 129, 130, 131, 132
P_LN = 133

S_XK = 72
S_WK = 81
V_QC = 134
def producer():
    L('L_producer')
    stamp_idx[0] = 0
    E(f'v_mov_b32 v{P_LN}, v0')
    E(f's_sub_u32 s{S_T0}, s{S_WV}, 4')
    E(f's_and_b32 s{S_H}, s{S_T0}, 1')
    E(f's_lshr_b32 s{S_RS}, s{S_T0}, 1')
    E(f's_mul_i32 s{S_T1}, s{S_PART}, {OPT["rotp"]}')
    E(f's_mul_i32 s{S_T2}, s{S_STRIP}, {OPT["rots"]}')
    E(f's_add_u32 s{S_T1}, s{S_T1}, s{S_T2}')
    E(f's_mul_i32 s{S_T2}, s{S_T1}, 7282')
    E(f's_lshr_b32 s{S_T2}, s{S_T2}, 16')
    E(f's_mul_i32 s{S_T2}, s{S_T2}, 9')
    E(f's_sub_u32 s{S_T1}, s{S_T1}, s{S_T2}')
    E(f's_add_u32 s{S_XB}, s{S_RB0}, s{S_RS}')
    E(f's_mul_i32 s{S_XB}, s{S_XB}, {XRB}')
    for t in range(9):
        E(f's_lshl_b32 s{S_T2}, s{S_T1}, 7')
        E(f's_add_u32 s{S_XK+t}, s{S_XB}, s{S_T2}')
        E(f's_mul_i32 s{S_WK+t}, s{S_T1}, {64*QROW}')
        if t < 8:
            E(f's_add_u32 s{S_T1}, s{S_T1}, 1')
            E(f's_cmp_eq_u32 s{S_T1}, 9')
            E(f's_cselect_b32 s{S_T1}, 0, s{S_T1}')
    E(f's_lshl_b32 s{S_T1}, s{S_T0}, 4')
    E(f's_mul_i32 s{S_T1}, s{S_T1}, {QROW}')
    E(f's_lshl_b32 s{S_T2}, s{S_STRIP}, 9')
    E(f's_add_u32 s{S_T1}, s{S_T1}, s{S_T2}')
    E(f'v_lshrrev_b32 v1, 5, v{P_LN}')
    E(f'v_mul_u32_u24 v2, {8*QROW}, v1')
    E(f'v_and_b32 v3, 31, v{P_LN}')
    E('v_lshl_add_u32 v2, v3, 4, v2')
    E(f'v_add_u32 v{V_QV}, s{S_T1}, v2')
    for jj in range(8):
        E(f's_mov_b32 s{S_JJ+jj}, {jj*QROW}')
    E(f'v_lshrrev_b32 v4, 3, v{P_LN}')
    E(f's_lshl_b32 s{S_T3}, s{S_H}, 3')
    E(f'v_add_u32 v4, s{S_T3}, v4')
    E('v_lshrrev_b32 v5, 1, v4')
    E(f'v_and_b32 v6, 7, v{P_LN}')
    E('v_xor_b32 v5, v5, v6')
    E('v_lshlrev_b32 v5, 4, v5')
    E(f'v_mul_u32_u24 v4, {K*2}, v4')
    E(f'v_add_u32 v{V_XV}, v4, v5')
    E(f's_lshl_b32 s{S_XL}, s{S_H}, 10')
    E(f's_lshl_b32 s{S_T3}, s{S_RS}, 11')
    E(f's_add_u32 s{S_XL}, s{S_XL}, s{S_T3}')
    E(f'v_add_u32 v{V_QC}, s{S_WK}, v{V_QV}')
    E('s_waitcnt lgkmcnt(0)')
    if OPT['pst']: stamp('p', True)
    srd(S_Q, 6, K * N * 4)
    srd(S_X, 4, M * K * 2)

    def opsW(t):
        b = V_Q + 32 * (t & 3)
        g = []
        for jj in range(8):
            pre = []
            if jj == 0 and t > 0: pre = [f'v_add_u32 v{V_QC}, s{S_WK+t}, v{V_QV}']
            g.append(pre + [f'buffer_load_dwordx4 v[{b+4*jj}:{b+4*jj+3}], v{V_QC}, s[{S_Q}:{S_Q+3}], s{S_JJ+jj} offen {OPT["qnt"]}'.rstrip()])
        return g
    def opsX(t):
        g = []
        for z in range(4):
            g.append([f's_add_u32 m0, s{S_XL}, {(t % 5) * 16384 + z * 4096}',
                      f's_add_u32 s{S_SOFF}, s{S_XK+t}, {2 * z * XRB}',
                      f'buffer_load_dwordx4 v{V_XV}, s[{S_X}:{S_X+3}], s{S_SOFF} offen lds'])
        return g
    def opsG(t):
        w = opsW(t); x = opsX(t)
        g = []
        for z in range(4): g += [w[2*z], w[2*z+1], x[z]]
        return g
    def opsY(u):
        pa = POS[2 * u] * XRB
        pb = POS[2 * u + 1] * XRB if 2 * u + 1 < len(POS) else pa
        pre = [f's_mov_b32 s{S_POSL}, {pa}', f's_cmp_eq_u32 s{S_RS}, 0',
               f's_cselect_b32 s{S_POSL}, s{S_POSL}, {pb}', f's_lshl_b32 s{S_T3}, s{S_H}, 10',
               f's_add_u32 s{S_POSL}, s{S_POSL}, s{S_T3}']
        g = []
        for kc in range(9):
            g.append((pre if kc == 0 else []) + [f's_add_u32 m0, s{S_POSL}, {kc * 2048}',
                      f's_add_u32 s{S_SOFF}, s{S_XK+kc}, {(8 + 2 * u) * XRB}',
                      f'buffer_load_dwordx4 v{V_XV}, s[{S_X}:{S_X+3}], s{S_SOFF} offen lds'])
        return g
    def emit(groups):
        for g in groups:
            for s_ in g: E(s_)
    def deq_instrs(t):
        b = V_Q + 32 * (t & 3)
        ins = []
        if not OPT['nodeq']:
            for e in range(4):
                for d in range(4):
                    lo = b + 4 * (2 * d) + e; hi = b + 4 * (2 * d + 1) + e
                    ins.append(f'v_lshl_add_u32 v{lo}, v{lo}, 7, v{V_LB}')
                    ins.append(f'v_lshl_add_u32 v{lo}, v{hi}, 11, v{lo}')
            for e in range(4):
                for d in range(4):
                    lo = b + 4 * (2 * d) + e
                    ins.append(f'ds_read_b32 v{b + 4*(2*e+1) + d}, v{lo}')
        for e in range(4):
            r = b + 4 * (2 * e + 1)
            a = V_WA0 if (e >> 1) == 0 else V_WA1
            w = f'ds_write_b128 v{a}, v[{r}:{r+3}] offset:{(t & 1) * 16384 + (e & 1) * 1024}'
            if not OPT['nodeq']: ins.append(f's_waitcnt lgkmcnt({(3 - e) * 4 + e})')
            ins.append(w)
        return ins
    def interleave(groups, ins):
        n = len(groups)
        if n == 0:
            for s_ in ins: E(s_)
            return
        per = -(-len(ins) // n)
        k = 0
        for g in groups:
            for s_ in g: E(s_)
            for s_ in ins[k:k+per]: E(s_)
            k += per
        for s_ in ins[k:]: E(s_)

    emit(opsG(0))
    if OPT['pst']: stamp('p', True)
    E(f'v_and_b32 v{V_LB}, 31, v{P_LN}')
    E(f'v_lshrrev_b32 v{V_WA1}, 3, v{V_LB}')
    E(f'v_and_b32 v{V_WA0}, 7, v{V_LB}')
    E(f'v_lshlrev_b32 v{V_LB}, 2, v{V_LB}')
    E(f'v_add_u32 v{V_LB}, {LUT}, v{V_LB}')
    T0, T1, T2 = 135, 136, 137
    E(f'v_lshlrev_b32 v{T0}, 1, v{V_WA0}')
    E(f'v_lshrrev_b32 v{T1}, 3, v{T0}')
    E(f'v_xor_b32 v{T0}, v{T0}, v{T1}')
    E(f's_lshl_b32 s{S_T3}, s{S_H}, 1')
    E(f'v_lshrrev_b32 v{T1}, 5, v{P_LN}')
    E(f'v_add_u32 v{T1}, s{S_T3}, v{T1}')
    E(f'v_lshl_add_u32 v{T0}, v{T1}, 4, v{T0}')
    E(f'v_lshlrev_b32 v{T0}, 4, v{T0}')
    E(f'v_lshl_add_u32 v{T0}, v{V_WA1}, 11, v{T0}')
    E(f's_lshl_b32 s{S_T3}, s{S_RS}, 13')
    E(f's_add_u32 s{S_T3}, s{S_T3}, {WST}')
    E(f'v_add_u32 v{V_WA0}, s{S_T3}, v{T0}')
    E(f'v_xor_b32 v{V_WA1}, 16, v{V_WA0}')
    emit(opsG(1))
    stamp('p')
    E('s_barrier')
    E('s_waitcnt vmcnt(12)')
    stamp('p')
    interleave(opsG(2), deq_instrs(0))
    E('s_waitcnt lgkmcnt(0)')
    E('s_barrier')
    stamp('p')
    for r in range(0, 8):
        if r + 2 <= 8: E('s_waitcnt vmcnt(12)')
        else: E('s_waitcnt vmcnt(0)')
        groups = []
        if r + 3 <= 8: groups = opsG(r + 3)
        if r == 7: groups = opsY(0)
        if OPT['cst']: stamp('p')
        interleave(groups, deq_instrs(r + 1))
        E('s_waitcnt lgkmcnt(0)')
        if OPT['cst']: stamp('p')
        E('s_barrier')
        if r in (3, 7) or OPT['cst']: stamp('p')
    emit(opsY(1)); E('s_waitcnt vmcnt(9)'); E('s_barrier'); stamp('p')
    emit(opsY(2)); emit(opsY(3)); E('s_waitcnt vmcnt(18)'); E('s_barrier')
    E('s_waitcnt vmcnt(9)'); E('s_barrier')
    emit(opsY(4)); E('s_waitcnt vmcnt(9)'); E('s_barrier')
    E(f's_cmp_eq_u32 s{S_NRB}, 19')
    E('s_cbranch_scc0 L_p_fin18')
    E(f's_cmp_eq_u32 s{S_RS}, 0')
    E('s_cbranch_scc0 L_p_noy5')
    emit(opsY(5))
    E('s_waitcnt vmcnt(9)')
    E('s_branch L_p_b13')
    L('L_p_noy5')
    E('s_waitcnt vmcnt(0)')
    L('L_p_b13')
    E('s_barrier')
    E('s_waitcnt vmcnt(0)')
    E('s_barrier')
    E('s_branch L_p_done')
    L('L_p_fin18')
    E('s_waitcnt vmcnt(0)')
    E('s_barrier')
    L('L_p_done')
    if OPT['stamps']:
        stamp('p')
        dump_stamps(1)
    rep_tail(P_LN)
    E('s_endpgm')

header()
prologue()
consumer()
producer()
L('L_end')
E('s_endpgm')
footer()
print('\n'.join(out))
```

```python
import sys
OPT = dict(stamps=0, prio=1, sc='', rotp=4, rots=1, cst=0, pst=0, rep=1, look=3, nxf=5, noepi=0, nomfma=0,
           sched='S1 X1 D W2 X2;S2 D W3 X3 W4;D S3 X4 W5;D S4 X5 W6;D S5 X6 W7;D S6 X7 W8;D S7 X8;D S8', ord='xw', qnt='', per=0, pprio=0, hard=0, pknop=1, noread=0, nodeq=0, nox=0, now=0, nolut=0, nowr=0)
for a in sys.argv[1:]:
    k, v = a.split('=')
    OPT[k] = int(v) if v.lstrip('-').isdigit() and k not in ('sched',) else v
NAME = 'standalone__normalfloat_lut_codebook_lookup__prompt_kernel'
out = []
def E(s): out.append('    ' + s)
def L(s): out.append(s + ':')

K, N, M = 576, 4608, 2048
QROW = N * 4
XRB = 16 * K * 2
ORB = 16 * N * 2
XSTG = 18 * 2048
XST = 0
XSH = 3 * XSTG
WST = XSH + 4096
LUT = WST + 32768
LDS_TOTAL = LUT + 16384

S_X, S_Q, S_O, S_CB, S_AM = 16, 20, 24, 28, 32
S_STRIP, S_PART, S_RB0, S_NRB, S_WV = 36, 37, 38, 39, 40
S_OB = 41
S_T0, S_T1, S_T2, S_T3 = 42, 43, 54, 55
S_JJ = 44
S_XB, S_XL, S_H, S_RS = 52, 53, 56, 57
S_SW = 58
S_DBG = 60
S_ST = 62
S_ST0 = 64
S_SOFF = 66
S_OB2 = 67
S_XL2 = 41
S_XK = 72
S_WK = 81
VSTAMP = 255

stamp_idx = [0]
def stamp(role, sync=False):
    if not OPT['stamps']: return
    i = stamp_idx[0]; stamp_idx[0] += 1
    if i > 0:
        E(f's_sub_u32 s{S_ST}, s{S_ST}, s{S_ST0}')
        E(f'v_writelane_b32 v{VSTAMP}, s{S_ST}, {i-1}')
    E(f's_memtime s[{S_ST}:{S_ST+1}]')
    if sync or role == 'p': E('s_waitcnt lgkmcnt(0)')
def stamp_flush():
    i = stamp_idx[0]
    E('s_waitcnt lgkmcnt(0)')
    E(f's_sub_u32 s{S_ST}, s{S_ST}, s{S_ST0}')
    E(f'v_writelane_b32 v{VSTAMP}, s{S_ST}, {i-1}')

def header():
    out.append('; Kernarg: 0 x(1,2048,576) bf16 | 8 qw(576,4608) i32 | 16 codebook(16) bf16 | 24 absmax(1,4608) bf16 | 32 out | 40 debug | 48 ws')
    out.append(f'; @launch grid=(256,1,1) block=(512,1,1) lds={LDS_TOTAL}')
    out.append('.amdgcn_target "amdgcn-amd-amdhsa--gfx950"')
    out.append('.text')
    out.append(f'.globl {NAME}')
    out.append('.p2align 8')
    out.append(f'.type {NAME},@function')
    L(NAME)

def footer():
    out.append('.section .rodata,"a"')
    out.append('.p2align 6')
    out.append(f'.amdhsa_kernel {NAME}')
    for s in ['next_free_vgpr 256', 'next_free_sgpr 96', 'accum_offset 256', 'group_segment_fixed_size 0',
              'kernarg_size 56', 'user_sgpr_count 2', 'user_sgpr_kernarg_segment_ptr 1',
              'system_sgpr_workgroup_id_x 1']:
        out.append('  .amdhsa_' + s)
    out.append('.end_amdhsa_kernel')

def srd(d, p, nbytes):
    E(f's_mov_b32 s{d}, s{p}')
    E(f's_and_b32 s{d+1}, s{p+1}, 0xffff')
    E(f's_mov_b32 s{d+2}, {nbytes}')
    E(f's_mov_b32 s{d+3}, 0x20000')

def prologue():
    E('s_cmp_ge_u32 s2, 256')
    E('s_cbranch_scc1 L_end')
    if OPT['rep'] > 1:
        E('s_mov_b32 s90, 0')
        L('L_start')
    E('s_load_dwordx4 s[4:7], s[0:1], 0')
    E('s_load_dwordx4 s[8:11], s[0:1], 16')
    E('s_load_dwordx2 s[12:13], s[0:1], 32')
    if OPT['stamps']:
        E(f's_load_dwordx2 s[{S_DBG}:{S_DBG+1}], s[0:1], 40')
        E(f's_memtime s[{S_ST0}:{S_ST0+1}]')
        E('s_memrealtime s[94:95]')
    E(f's_and_b32 s{S_T0}, s2, 7')
    E(f's_lshl_b32 s{S_T0}, s{S_T0}, 5')
    E(f's_lshr_b32 s{S_T1}, s2, 3')
    E(f's_add_u32 s{S_T0}, s{S_T0}, s{S_T1}')
    E(f's_cmp_ge_u32 s{S_T0}, 252')
    E('s_cbranch_scc1 L_end')
    E(f's_mul_i32 s{S_STRIP}, s{S_T0}, 293')
    E(f's_lshr_b32 s{S_STRIP}, s{S_STRIP}, 11')
    E(f's_mul_i32 s{S_T1}, s{S_STRIP}, 7')
    E(f's_sub_u32 s{S_PART}, s{S_T0}, s{S_T1}')
    E(f's_mul_i32 s{S_RB0}, s{S_PART}, 18')
    E(f's_min_u32 s{S_T1}, s{S_PART}, 2')
    E(f's_add_u32 s{S_RB0}, s{S_RB0}, s{S_T1}')
    E('v_lshrrev_b32 v1, 6, v0')
    E('v_and_b32 v0, 63, v0')
    E(f'v_readfirstlane_b32 s{S_WV}, v1')
    if OPT['stamps']:
        E(f'v_mov_b32 v{VSTAMP}, 0')
    E('s_nop 3')
    E(f's_cmp_ge_u32 s{S_WV}, 4')
    E('s_cbranch_scc1 L_producer')

V_ACC = 0
V_W = 152
V_XF = 184
NXF = OPT['nxf']; LOOK = OPT['look']
V_SC = V_XF + 4 * NXF
V_TMP = V_SC + 6
V_XA0, V_XA1, V_XB0, V_XB1, V_WA01, V_WA23 = [V_TMP + 16 + i for i in range(6)]
V_OV = V_TMP + 22
V_LN = V_TMP + 26
V_XC0, V_XC1 = V_TMP + 27, V_TMP + 28
assert V_XC1 < 255 and V_TMP % 2 == 0 and V_SC % 2 == 0

def ACC(i, q): return (16 * i + 4 * q) if i < 9 else 144 + 4 * q
def Wreg(u, q): return V_W + 16 * u + 4 * q

def epilogue_instrs(i, sel):
    t = V_TMP + 8 * sel
    ins = []
    if OPT['noepi']: return ins
    nq = 4 if i < 9 else 2
    for q in range(nq):
        for r in (0, 2):
            a = ACC(i, q) + r
            sp = V_SC + (q & ~1)
            sel = 'op_sel_hi:[1,0]' if (q & 1) == 0 else 'op_sel:[0,1] op_sel_hi:[1,1]'
            ins.append(f'v_pk_mul_f32 v[{a}:{a+1}], v[{a}:{a+1}], v[{sp}:{sp+1}] {sel}')
    if i < 9:
        for r in range(4):
            ins.append(f'v_cvt_pk_bf16_f32 v{t+2*r}, v{ACC(i,0)+r}, v{ACC(i,1)+r}')
            ins.append(f'v_cvt_pk_bf16_f32 v{t+2*r+1}, v{ACC(i,2)+r}, v{ACC(i,3)+r}')
        grp = [f's_mov_b64 exec, s[{S_SW}:{S_SW+1}]']
        for r in range(4):
            grp.append(f'v_swap_b32 v{t+2*r}, v{t+2*r+1}')
        grp.append('s_mov_b64 exec, -1')
        ins.append('\n    '.join(grp))
        ins.append(f's_add_u32 s{S_SOFF}, s{S_OB}, {i * ORB}')
        for r in range(4):
            ins.append(f'buffer_store_dwordx2 v[{t+2*r}:{t+2*r+1}], v{V_OV+r}, s[{S_O}:{S_O+3}], s{S_SOFF} offen {OPT["sc"]}'.rstrip())
    else:
        for r in range(4):
            ins.append(f'v_cvt_pk_bf16_f32 v{t+r}, v{ACC(i,0)+r}, v{ACC(i,1)+r}')
        for r in range(4):
            ins.append(f'buffer_store_dword v{t+r}, v{V_OV+r}, s[{S_O}:{S_O+3}], s{S_OB2} offen {OPT["sc"]}'.rstrip())
    return ins

CBVALS = [0xbf80, 0xbf32, 0xbf06, 0xbeca, 0xbe92, 0xbe3d, 0xbdba, 0x0000,
          0x3da3, 0x3e25, 0x3e7c, 0x3ead, 0x3ee2, 0x3f10, 0x3f39, 0x3f80]

def consumer():
    L('L_consumer')
    E(f'v_mov_b32 v{V_LN}, v0')
    E(f's_and_b32 s{S_H}, s{S_WV}, 1')
    E(f's_lshr_b32 s{S_RS}, s{S_WV}, 1')
    E(f's_cmp_eq_u32 s{S_RS}, 1')
    E(f's_cselect_b64 s[{S_SW}:{S_SW+1}], -1, 0')
    E(f'v_and_b32 v5, 15, v{V_LN}')
    E(f'v_lshrrev_b32 v7, 4, v{V_LN}')
    E('v_lshrrev_b32 v6, 1, v5')
    E('v_xor_b32 v6, v6, v7')
    E('v_lshlrev_b32 v6, 4, v6')
    E(f'v_lshl_add_u32 v6, v5, 7, v6')
    E(f'v_add_u32 v{V_XB0}, {XSH}, v6')
    E(f'v_xor_b32 v{V_XB1}, 64, v{V_XB0}')
    E(f's_mul_i32 s{S_T1}, s{S_RS}, {9*2048}')
    E(f'v_add_u32 v{V_XA0}, s{S_T1}, v6')
    E(f'v_xor_b32 v{V_XA1}, 64, v{V_XA0}')
    E(f's_lshl_b32 s{S_T1}, s{S_H}, 12')
    E(f's_add_u32 s{S_T1}, s{S_T1}, {WST}')
    E(f's_lshl_b32 s{S_T2}, s{S_RS}, 11')
    E(f's_add_u32 s{S_T3}, s{S_T1}, s{S_T2}')
    E(f'v_lshlrev_b32 v6, 4, v{V_LN}')
    E(f'v_add_u32 v{V_WA01}, s{S_T3}, v6')
    E(f'v_xor_b32 v{V_WA23}, 2048, v{V_WA01}') if (WST % 4096 == 0) else None
    if WST % 4096 != 0:
        E(f's_xor_b32 s{S_T2}, s{S_T2}, 2048')
        E(f's_add_u32 s{S_T3}, s{S_T1}, s{S_T2}')
        E(f'v_add_u32 v{V_WA23}, s{S_T3}, v6')
    E(f'v_mul_u32_u24 v{V_OV}, {4*N*2}, v7')
    E(f'v_lshl_add_u32 v{V_OV}, v5, 3, v{V_OV}')
    for r in range(1, 4): E(f'v_add_u32 v{V_OV+r}, {r*N*2}, v{V_OV}')
    E(f's_lshl_b32 s{S_T1}, s{S_WV}, 12')
    E(f's_add_u32 s{S_T1}, s{S_T1}, {LUT}')
    E(f'v_lshlrev_b32 v6, 4, v{V_LN}')
    E(f'v_add_u32 v6, s{S_T1}, v6')
    E(f'v_lshrrev_b32 v1, 2, v{V_LN}')
    E('v_lshlrev_b32 v1, 1, v1')
    E('v_lshlrev_b32 v4, 3, v5')
    E('s_waitcnt lgkmcnt(0)')
    if OPT['pst']: stamp('c', True)
    srd(S_CB, 8, 32)
    E(f'buffer_load_ushort v2, v1, s[{S_CB}:{S_CB+3}], 0 offen')
    E(f's_lshl_b32 s{S_T0}, s{S_WV}, 3')
    E(f's_add_u32 s8, s8, s{S_T0}')
    E(f's_addc_u32 s9, s9, 0')
    E(f's_load_dwordx2 s[{S_T2}:{S_T3}], s[8:9], 0')
    srd(S_AM, 10, N * 2)
    srd(S_O, 12, M * N * 2)
    E(f's_lshl_b32 s{S_T0}, s{S_STRIP}, 8')
    E(f's_lshl_b32 s{S_T1}, s{S_H}, 7')
    E(f's_add_u32 s{S_T0}, s{S_T0}, s{S_T1}')
    E(f'buffer_load_dwordx2 v[8:9], v4, s[{S_AM}:{S_AM+3}], s{S_T0} offen')
    E(f's_mul_i32 s{S_OB}, s{S_RS}, 9')
    E(f's_add_u32 s{S_OB}, s{S_OB}, s{S_RB0}')
    E(f's_mul_i32 s{S_OB}, s{S_OB}, {ORB}')
    E(f's_add_u32 s{S_OB}, s{S_OB}, s{S_T0}')
    E(f's_add_u32 s{S_OB2}, s{S_RB0}, 18')
    E(f's_mul_i32 s{S_OB2}, s{S_OB2}, {ORB}')
    E(f's_add_u32 s{S_OB2}, s{S_OB2}, s{S_T0}')
    E(f's_lshl_b32 s{S_T1}, s{S_RS}, 2')
    E(f's_add_u32 s{S_OB2}, s{S_OB2}, s{S_T1}')
    E('s_waitcnt vmcnt(1) lgkmcnt(0)')
    if OPT['pst']: stamp('c', True)
    E(f's_lshl_b32 s68, s{S_T2}, 16')
    E(f's_and_b32 s69, s{S_T2}, 0xffff0000')
    E(f's_lshl_b32 s70, s{S_T3}, 16')
    E(f's_and_b32 s71, s{S_T3}, 0xffff0000')
    for i in range(4):
        base = 16 + 4 * i
        for c in range(4):
            E(f'v_or_b32 v{base+c}, s{68 + i}, v2')
        E(f'ds_write_b128 v6, v[{base}:{base+3}] offset:{i*1024}')
    E('s_waitcnt vmcnt(0)')
    E(f's_mov_b64 exec, s[{S_SW}:{S_SW+1}]')
    E('v_swap_b32 v8, v9')
    E('s_mov_b64 exec, -1')
    E(f'v_lshlrev_b32 v{V_SC}, 16, v8')
    E(f'v_and_b32 v{V_SC+1}, 0xffff0000, v8')
    E(f'v_lshlrev_b32 v{V_SC+2}, 16, v9')
    E(f'v_and_b32 v{V_SC+3}, 0xffff0000, v9')
    E('s_waitcnt lgkmcnt(0)')
    if OPT['pst']: stamp('c', True)
    E('s_barrier')
    if OPT['prio']: E(f's_setprio {OPT["prio"]}')
    stamp('c')

    stream = []
    for t in range(9):
        if t < 8:
            order = [(i, u) for u in range(2) for i in range(10)]
        else:
            order = [(9, 0), (0, 0), (9, 1), (0, 1)] + [(i, u) for i in range(1, 9) for u in range(2)]
        for k, (i, u) in enumerate(order):
            stream.append(dict(t=t, i=i, u=u, first=(t == 0 and u == 0), newround=(k == 0), k=k,
                               last=(t == 8 and u == 1)))
    n_all = len(stream)
    for n, f in enumerate(stream): f['buf'] = V_XF + 4 * (n % NXF)
    lg = []
    def readW(t, u):
        for q in range(4):
            a = V_WA01 if q < 2 else V_WA23
            r = Wreg(u, q)
            E(f'ds_read_b128 v[{r}:{r+3}], v{a} offset:{(t & 1) * 16384 + u * 8192 + (q & 1) * 1024}')
            lg.append(('W', t, u))
    def issue_read(n):
        f = stream[n]
        if f['newround']:
            if f['t'] > 0:
                E('s_waitcnt lgkmcnt(0)'); lg.clear()
            E('s_barrier')
            if OPT['cst'] or f['t'] in (0, 1, 2, 3, 8): stamp('c')
            readW(f['t'], 0)
            if f['t'] == 0: readW(0, 1)
        if f['newround']:
            E(f'v_add_u32 v{V_XC0}, {(f["t"] % 3) * XSTG}, v{V_XA0}')
            E(f'v_add_u32 v{V_XC1}, {(f["t"] % 3) * XSTG}, v{V_XA1}')
        if f['i'] < 9:
            a = V_XC0 if f['u'] == 0 else V_XC1
            off = f['i'] * 2048
        else:
            a = V_XB0 if f['u'] == 0 else V_XB1
            off = (f['t'] & 1) * 2048
        if OPT['noread']: return
        E(f'ds_read_b128 v[{f["buf"]}:{f["buf"]+3}], v{a} offset:{off}')
        lg.append(('X', n))
    def wait_tags(tags):
        idx = None
        for k, tag in enumerate(lg):
            if tag in tags: idx = k
        if idx is None: return
        remain = len(lg) - idx - 1
        E(f's_waitcnt lgkmcnt({min(remain, 15)})')
        del lg[:idx + 1]

    pending = []
    for n in range(LOOK): issue_read(n)
    done_ep = []
    for n in range(n_all):
        f = stream[n]
        if n + LOOK < n_all: issue_read(n + LOOK)
        if f['newround'] and f['t'] > 0:
            readW(f['t'], 1)
        wait_tags([('X', n), ('W', f['t'], f['u'])])
        nq = 4 if f['i'] < 9 else 2
        for q in range(nq):
            a = ACC(f['i'], q); w = Wreg(f['u'], q)
            c = '0' if f['first'] else f'v[{a}:{a+3}]'
            if out[-1].strip().startswith('v_pk_mul') and OPT['pknop'] >= 0: E(f's_nop {OPT["pknop"]}')
            if not OPT['nomfma']:
                E(f'v_mfma_f32_16x16x32_bf16 v[{a}:{a+3}], v[{f["buf"]}:{f["buf"]+3}], v[{w}:{w+3}], {c}')
            for _ in range(4):
                if pending: E(pending.pop(0))
        if f['t'] == 8:
            if n >= 1 and stream[n-1]['t'] == 8 and stream[n-1]['last'] and stream[n-1]['i'] == 9:
                pass
            if n >= 1 and stream[n-1]['t'] == 8 and stream[n-1]['last'] and stream[n-1]['i'] < 9:
                i = stream[n-1]['i']
                pending.extend(epilogue_instrs(i, i & 1))
    while pending: E(pending.pop(0))
    E(f's_cmp_lt_u32 s{S_PART}, 2')
    E('s_cbranch_scc0 L_c_nosh')
    for s in epilogue_instrs(9, 1): E(s)
    L('L_c_nosh')
    E('s_nop 7')
    for s in epilogue_instrs(8, 0): E(s)
    if OPT['stamps']:
        stamp('c')
        E('s_waitcnt vmcnt(0)')
        stamp('c')
        dump_stamps(0)
    rep_tail(V_LN)
    E('s_endpgm')

def rep_tail(ln):
    if OPT['rep'] <= 1: return
    E('s_waitcnt vmcnt(0) lgkmcnt(0)')
    E('s_barrier')
    E('s_add_u32 s90, s90, 1')
    E(f's_lshl_b32 s91, s{S_WV}, 6')
    E(f'v_add_u32 v0, s91, v{ln}')
    E('s_setprio 0')
    E(f's_cmp_lt_u32 s90, {OPT["rep"]}')
    E('s_cbranch_scc1 L_start')

def dump_stamps(role):
    stamp_flush()
    E('s_memrealtime s[92:93]')
    E('s_waitcnt lgkmcnt(0)')
    E('s_sub_u32 s92, s92, s94')
    E(f'v_writelane_b32 v{VSTAMP}, s92, {15 if not OPT["cst"] else 31}')
    E('s_cmp_lg_u32 s2, 0')
    E(f's_cbranch_scc1 L_nost{role}')
    E(f's_cmp_lg_u32 s{S_WV}, {4*role}')
    E(f's_cbranch_scc1 L_nost{role}')
    E('v_mbcnt_lo_u32_b32 v1, -1, 0')
    E('v_mbcnt_hi_u32_b32 v1, -1, v1')
    E('v_lshlrev_b32 v1, 2, v1')
    E('v_cmp_gt_u32 vcc, 128, v1')
    E('s_and_saveexec_b64 s[70:71], vcc')
    E(f'global_store_dword v1, v{VSTAMP}, s[{S_DBG}:{S_DBG+1}] offset:{128*role}')
    E('s_waitcnt vmcnt(0)')
    L(f'L_nost{role}')

V_Q = 0
V_QV, V_XV, V_LB, V_WA = 96, 97, 98, 99
P_LN = 100
V_QC = 101
lblc = [0]
def producer():
    L('L_producer')
    stamp_idx[0] = 0
    E(f'v_mov_b32 v{P_LN}, v0')
    E(f's_sub_u32 s{S_T0}, s{S_WV}, 4')
    E(f's_and_b32 s{S_H}, s{S_T0}, 1')
    E(f's_lshr_b32 s{S_RS}, s{S_T0}, 1')
    E(f's_mul_i32 s{S_T1}, s{S_PART}, {OPT["rotp"]}')
    E(f's_mul_i32 s{S_T2}, s{S_STRIP}, {OPT["rots"]}')
    E(f's_add_u32 s{S_T1}, s{S_T1}, s{S_T2}')
    E(f's_mul_i32 s{S_T2}, s{S_T1}, 7282')
    E(f's_lshr_b32 s{S_T2}, s{S_T2}, 16')
    E(f's_mul_i32 s{S_T2}, s{S_T2}, 9')
    E(f's_sub_u32 s{S_T1}, s{S_T1}, s{S_T2}')
    E(f's_add_u32 s{S_XB}, s{S_RB0}, s{S_RS}')
    E(f's_mul_i32 s{S_XB}, s{S_XB}, {XRB}')
    E(f's_cmp_lt_u32 s{S_PART}, 2')
    E(f's_cselect_b32 s{S_NRB}, 1, 0')
    E(f's_cmp_eq_u32 s{S_RS}, 0')
    E(f's_cselect_b32 s{S_NRB}, s{S_NRB}, 0')
    E(f's_lshl_b32 s{S_T2}, s{S_T1}, 7')
    E(f's_add_u32 s{S_XK}, s{S_XB}, s{S_T2}')
    E(f's_mul_i32 s{S_WK}, s{S_T1}, {64*QROW}')
    E(f's_lshl_b32 s{S_T2}, s{S_T0}, 4')
    E(f's_mul_i32 s{S_T2}, s{S_T2}, {QROW}')
    E(f's_lshl_b32 s{S_T3}, s{S_STRIP}, 9')
    E(f's_add_u32 s{S_T2}, s{S_T2}, s{S_T3}')
    E(f'v_lshrrev_b32 v1, 5, v{P_LN}')
    E(f'v_mul_u32_u24 v2, {8*QROW}, v1')
    E(f'v_and_b32 v3, 31, v{P_LN}')
    E('v_lshl_add_u32 v2, v3, 4, v2')
    E(f'v_add_u32 v{V_QV}, s{S_T2}, v2')
    for jj in range(8):
        E(f's_mov_b32 s{S_JJ+jj}, {jj*QROW}')
    E(f'v_lshrrev_b32 v4, 3, v{P_LN}')
    E(f's_lshl_b32 s{S_T3}, s{S_H}, 3')
    E(f'v_add_u32 v4, s{S_T3}, v4')
    E('v_lshrrev_b32 v5, 1, v4')
    E(f'v_and_b32 v6, 7, v{P_LN}')
    E('v_xor_b32 v5, v5, v6')
    E('v_lshlrev_b32 v5, 4, v5')
    E(f'v_mul_u32_u24 v4, {K*2}, v4')
    E(f'v_add_u32 v{V_XV}, v4, v5')
    E(f's_lshl_b32 s{S_XL}, s{S_H}, 10')
    E(f's_lshl_b32 s{S_T3}, s{S_RS}, 11')
    E(f's_add_u32 s{S_XL}, s{S_XL}, s{S_T3}')
    E(f's_lshl_b32 s{S_XL2}, s{S_H}, 10')
    E(f's_add_u32 s{S_XL2}, s{S_XL2}, {XSH}')
    E(f'v_add_u32 v{V_QC}, s{S_WK}, v{V_QV}')
    E('s_waitcnt lgkmcnt(0)')
    if OPT['pst']: stamp('p', True)
    srd(S_Q, 6, K * N * 4)

    vm = []
    def opsW(t):
        b = V_Q + 32 * (t % 3)
        g = []
        if OPT['now'] and t > 1: return g
        for jj in range(8):
            pre = []
            if jj == 0 and t > 0: pre = [f'v_add_u32 v{V_QC}, s{S_WK+t}, v{V_QV}']
            g.append((pre + [f'buffer_load_dwordx4 v[{b+4*jj}:{b+4*jj+3}], v{V_QC}, s[{S_Q}:{S_Q+3}], s{S_JJ+jj} offen {OPT["qnt"]}'.rstrip()], ('W', t), False))
        return g
    def opsX(t):
        g = []
        if OPT['nox'] and t > 0: return g
        for z in range(9):
            ins = [f's_add_u32 m0, s{S_XL}, {(t % 3) * XSTG + z * 4096}',
                   f's_add_u32 s{S_SOFF}, s{S_XK+t}, {2 * z * XRB}',
                   f'buffer_load_dwordx4 v{V_XV}, s[{S_X}:{S_X+3}], s{S_SOFF} offen lds']
            g.append((ins, ('X', t), False))
        return g
    def opsS(t):
        if OPT['nox'] and t > 0: return []
        lblc[0] += 1
        ins = [f's_cmp_eq_u32 s{S_NRB}, 1', f's_cbranch_scc0 L_sk{lblc[0]}',
               f's_add_u32 m0, s{S_XL2}, {(t & 1) * 2048}',
               f's_add_u32 s{S_SOFF}, s{S_XK+t}, {18 * XRB}',
               f'buffer_load_dwordx4 v{V_XV}, s[{S_X}:{S_X+3}], s{S_SOFF} offen lds',
               f'@L_sk{lblc[0]}']
        return [(ins, ('S', t), True)]
    def ops(tok):
        return {'W': opsW, 'X': opsX, 'S': opsS}[tok[0]](int(tok[1:]))
    def emit_group(g):
        for s_ in g[0]:
            if s_.startswith('@'): L(s_[1:])
            else: E(s_)
        vm.append((g[1], g[2]))
    def vwait(*tags):
        idx = None
        for k, (tg, opt) in enumerate(vm):
            if tg in tags: idx = k
        if idx is None: return
        rest = vm[idx + 1:]
        n = sum(1 for (tg, opt) in rest if not opt)
        E(f's_waitcnt vmcnt({n})')
        del vm[:idx + 1]
    def landed(tag): return all(tg != tag for tg, _ in vm)
    def deq_instrs(t):
        b = V_Q + 32 * (t % 3)
        ins = []
        if OPT['nodeq'] and t > 0: return ins
        for half in range(2):
            es = (2 * half, 2 * half + 1)
            for e in es:
                for d in range(4):
                    lo = b + 4 * (2 * d) + e
                    ins.append(f'v_lshl_add_u32 v{lo}, v{lo}, 6, v{V_LB}')
            for e in es:
                for d in range(4):
                    lo = b + 4 * (2 * d) + e; hi = b + 4 * (2 * d + 1) + e
                    ins.append(f'v_lshl_add_u32 v{lo}, v{hi}, 10, v{lo}')
        rd = []
        for e in range(4):
            for d in range(4):
                lo = b + 4 * (2 * d) + e
                rd.append(f'ds_read_b32 v{b + 4*(2*e+1) + d}, v{lo}')
        if not OPT['nolut']: ins += rd
        if OPT['nowr']: return ins + ['s_waitcnt lgkmcnt(0)']
        for e in range(4):
            r = b + 4 * (2 * e + 1)
            ins.append(f's_waitcnt lgkmcnt({(3 - e) * 4 + e})')
            ins.append(f'ds_write_b128 v{V_WA}, v[{r}:{r+3}] offset:{(t & 1) * 16384 + e * 1024}')
        return ins
    def interleave(groups, ins, per=None):
        n = len(groups)
        if n == 0:
            for s_ in ins: E(s_)
            return
        if per is None: per = OPT['per'] if OPT['per'] else -(-len(ins) // n)
        k = 0
        for g in groups:
            emit_group(g)
            for s_ in ins[k:k+per]: E(s_)
            k += per
        for s_ in ins[k:]: E(s_)

    for g in opsW(0): emit_group(g)
    srd(S_X, 4, M * K * 2)
    for g in opsX(0) + opsS(0): emit_group(g)
    if OPT['pst']: stamp('p', True)
    for t in range(1, 9):
        E(f's_add_u32 s{S_T1}, s{S_T1}, 1')
        E(f's_cmp_eq_u32 s{S_T1}, 9')
        E(f's_cselect_b32 s{S_T1}, 0, s{S_T1}')
        E(f's_lshl_b32 s{S_T2}, s{S_T1}, 7')
        E(f's_add_u32 s{S_XK+t}, s{S_XB}, s{S_T2}')
        E(f's_mul_i32 s{S_WK+t}, s{S_T1}, {64*QROW}')
    E(f'v_and_b32 v{V_LB}, 31, v{P_LN}')
    T0, T1 = 102, 103
    E(f'v_lshrrev_b32 v{T0}, 4, v{V_LB}')
    E(f'v_and_b32 v{T1}, 15, v{V_LB}')
    E(f'v_lshlrev_b32 v{T1}, 4, v{T1}')
    E(f'v_lshl_add_u32 v{T1}, v{T0}, 12, v{T1}')
    E(f'v_lshrrev_b32 v{T0}, 5, v{P_LN}')
    E(f'v_lshl_add_u32 v{T1}, v{T0}, 8, v{T1}')
    E(f's_lshl_b32 s{S_T3}, s{S_H}, 9')
    E(f's_lshl_b32 s{S_T2}, s{S_RS}, 13')
    E(f's_add_u32 s{S_T3}, s{S_T3}, s{S_T2}')
    E(f's_add_u32 s{S_T3}, s{S_T3}, {WST}')
    E(f'v_add_u32 v{V_WA}, s{S_T3}, v{T1}')
    E(f'v_and_b32 v{V_LB}, 15, v{V_LB}')
    E(f'v_lshlrev_b32 v{V_LB}, 2, v{V_LB}')
    E(f'v_add_u32 v{V_LB}, {LUT}, v{V_LB}')
    if OPT['pprio']: E(f's_setprio {OPT["pprio"]}')
    stamp('p')
    E('s_barrier')
    vwait(('W', 0))
    stamp('p')
    interleave(opsW(1), deq_instrs(0))
    vwait(('X', 0), ('S', 0))
    E('s_waitcnt lgkmcnt(0)')
    stamp('p')
    E('s_barrier')
    stamp('p')
    sched = [r.split() for r in OPT['sched'].replace('_', ' ').split(';')]
    for r in range(0, 8):
        toks = sched[r]
        k = toks.index('D')
        for tok in toks[:k]:
            for g in ops(tok): emit_group(g)
        vwait(('W', r + 1))
        gs = []
        for tok in toks[k+1:]: gs += ops(tok)
        interleave(gs, deq_instrs(r + 1), per=(OPT['per'] or max(4, -(-56 // max(1, len(gs))))))
        if OPT['cst']: stamp('p')
        vwait(('X', r + 1), ('S', r + 1))
        E('s_waitcnt lgkmcnt(0)')
        if OPT['cst']: stamp('p')
        E('s_barrier')
        if OPT['cst'] or r in (0, 1, 2, 7): stamp('p')
    if OPT['stamps']:
        stamp('p')
        dump_stamps(1)
    rep_tail(P_LN)
    E('s_endpgm')

header()
prologue()
consumer()
producer()
L('L_end')
E('s_endpgm')
footer()
print('\n'.join(out))
```

```python
import sys
OPT = dict(stamps=0, prio=1, sc='', rotp=4, rots=1, cst=0, pst=0, rep=1, look=3, nxf=5, noepi=0, nomfma=0,
           sched='S1 X1 D W2 X2;S2 D W3 X3 W4;D S3 X4 W5;D S4 X5 W6;D S5 X6 W7;D S6 X7 W8;D S7 X8;D S8', ord='xw', qnt='', per=0, pprio=0, hard=0, pknop=1, noread=0, nodeq=0, nox=0, now=0, nolut=0, nowr=0, gst=0, rotm=9, rotk=1, pf=0, pfw=37, pfx=61, pfo='')
for a in sys.argv[1:]:
    k, v = a.split('=')
    OPT[k] = int(v) if v.lstrip('-').isdigit() and k not in ('sched',) else v
NAME = 'standalone__normalfloat_lut_codebook_lookup__prompt_kernel'
out = []
def E(s): out.append('    ' + s)
def L(s): out.append(s + ':')

K, N, M = 576, 4608, 2048
QROW = N * 4
XRB = 16 * K * 2
ORB = 16 * N * 2
XSTG = 18 * 2048
XST = 0
XSH = 3 * XSTG
WST = XSH + 4096
LUT = WST + 32768
LDS_TOTAL = LUT + 16384

S_X, S_Q, S_O, S_CB, S_AM = 16, 20, 24, 28, 32
S_STRIP, S_PART, S_RB0, S_NRB, S_WV = 36, 37, 38, 39, 40
S_OB = 41
S_T0, S_T1, S_T2, S_T3 = 42, 43, 54, 55
S_JJ = 44
S_XB, S_XL, S_H, S_RS = 52, 53, 56, 57
S_SW = 58
S_DBG = 60
S_ST = 62
S_ST0 = 64
S_SOFF = 66
S_OB2 = 67
S_XL2 = 41
S_XK = 72
S_WK = 81
VSTAMP = 255

stamp_idx = [0]
def stamp(role, sync=False):
    if not OPT['stamps']: return
    i = stamp_idx[0]; stamp_idx[0] += 1
    if i > 0:
        E(f's_sub_u32 s{S_ST}, s{S_ST}, s{S_ST0}')
        E(f'v_writelane_b32 v{VSTAMP}, s{S_ST}, {i-1}')
    E(f's_memtime s[{S_ST}:{S_ST+1}]')
    if sync or role == 'p': E('s_waitcnt lgkmcnt(0)')
def stamp_flush():
    i = stamp_idx[0]
    E('s_waitcnt lgkmcnt(0)')
    E(f's_sub_u32 s{S_ST}, s{S_ST}, s{S_ST0}')
    E(f'v_writelane_b32 v{VSTAMP}, s{S_ST}, {i-1}')

def header():
    out.append('; Kernarg: 0 x(1,2048,576) bf16 | 8 qw(576,4608) i32 | 16 codebook(16) bf16 | 24 absmax(1,4608) bf16 | 32 out | 40 debug | 48 ws')
    out.append(f'; @launch grid=(256,1,1) block=(512,1,1) lds={LDS_TOTAL}')
    out.append('.amdgcn_target "amdgcn-amd-amdhsa--gfx950"')
    out.append('.text')
    out.append(f'.globl {NAME}')
    out.append('.p2align 8')
    out.append(f'.type {NAME},@function')
    L(NAME)

def footer():
    out.append('.section .rodata,"a"')
    out.append('.p2align 6')
    out.append(f'.amdhsa_kernel {NAME}')
    for s in ['next_free_vgpr 256', 'next_free_sgpr 96', 'accum_offset 256', 'group_segment_fixed_size 0',
              'kernarg_size 56', 'user_sgpr_count 2', 'user_sgpr_kernarg_segment_ptr 1',
              'system_sgpr_workgroup_id_x 1']:
        out.append('  .amdhsa_' + s)
    out.append('.end_amdhsa_kernel')

def srd(d, p, nbytes):
    E(f's_mov_b32 s{d}, s{p}')
    E(f's_and_b32 s{d+1}, s{p+1}, 0xffff')
    E(f's_mov_b32 s{d+2}, {nbytes}')
    E(f's_mov_b32 s{d+3}, 0x20000')

def prologue():
    E('s_cmp_ge_u32 s2, 256')
    E('s_cbranch_scc1 L_end')
    if OPT['rep'] > 1:
        E('s_mov_b32 s90, 0')
        L('L_start')
    E('s_load_dwordx4 s[4:7], s[0:1], 0')
    E('s_load_dwordx4 s[8:11], s[0:1], 16')
    E('s_load_dwordx2 s[12:13], s[0:1], 32')
    if OPT['stamps']:
        E(f's_load_dwordx2 s[{S_DBG}:{S_DBG+1}], s[0:1], 40')
        E(f's_memtime s[{S_ST0}:{S_ST0+1}]')
        E('s_memrealtime s[94:95]')
    E(f's_and_b32 s{S_T0}, s2, 7')
    E(f's_lshl_b32 s{S_T0}, s{S_T0}, 5')
    E(f's_lshr_b32 s{S_T1}, s2, 3')
    E(f's_add_u32 s{S_T0}, s{S_T0}, s{S_T1}')
    E(f's_cmp_ge_u32 s{S_T0}, 252')
    E('s_cbranch_scc1 L_end')
    E(f's_mul_i32 s{S_STRIP}, s{S_T0}, 293')
    E(f's_lshr_b32 s{S_STRIP}, s{S_STRIP}, 11')
    E(f's_mul_i32 s{S_T1}, s{S_STRIP}, 7')
    E(f's_sub_u32 s{S_PART}, s{S_T0}, s{S_T1}')
    E(f's_mul_i32 s{S_RB0}, s{S_PART}, 18')
    E(f's_min_u32 s{S_T1}, s{S_PART}, 2')
    E(f's_add_u32 s{S_RB0}, s{S_RB0}, s{S_T1}')
    E('v_lshrrev_b32 v1, 6, v0')
    E('v_and_b32 v0, 63, v0')
    E(f'v_readfirstlane_b32 s{S_WV}, v1')
    if OPT['stamps']:
        E(f'v_mov_b32 v{VSTAMP}, 0')
    E('s_nop 3')
    E(f's_cmp_ge_u32 s{S_WV}, 4')
    E('s_cbranch_scc1 L_producer')

V_ACC = 0
V_W = 152
V_XF = 184
NXF = OPT['nxf']; LOOK = OPT['look']
V_SC = V_XF + 4 * NXF
V_TMP = V_SC + 6
V_XA0, V_XA1, V_XB0, V_XB1, V_WA01, V_WA23 = [V_TMP + 16 + i for i in range(6)]
V_OV = V_TMP + 22
V_LN = V_TMP + 26
V_XC0, V_XC1 = V_TMP + 27, V_TMP + 28
assert V_XC1 < 255 and V_TMP % 2 == 0 and V_SC % 2 == 0

def ACC(i, q): return (16 * i + 4 * q) if i < 9 else 144 + 4 * q
def Wreg(u, q): return V_W + 16 * u + 4 * q

def epilogue_instrs(i, sel):
    t = V_TMP + 8 * sel
    ins = []
    if OPT['noepi']: return ins
    nq = 4 if i < 9 else 2
    for q in range(nq):
        for r in (0, 2):
            a = ACC(i, q) + r
            sp = V_SC + (q & ~1)
            sel = 'op_sel_hi:[1,0]' if (q & 1) == 0 else 'op_sel:[0,1] op_sel_hi:[1,1]'
            ins.append(f'v_pk_mul_f32 v[{a}:{a+1}], v[{a}:{a+1}], v[{sp}:{sp+1}] {sel}')
    if i < 9:
        for r in range(4):
            ins.append(f'v_cvt_pk_bf16_f32 v{t+2*r}, v{ACC(i,0)+r}, v{ACC(i,1)+r}')
            ins.append(f'v_cvt_pk_bf16_f32 v{t+2*r+1}, v{ACC(i,2)+r}, v{ACC(i,3)+r}')
        grp = [f's_mov_b64 exec, s[{S_SW}:{S_SW+1}]']
        for r in range(4):
            grp.append(f'v_swap_b32 v{t+2*r}, v{t+2*r+1}')
        grp.append('s_mov_b64 exec, -1')
        ins.append('\n    '.join(grp))
        ins.append(f's_add_u32 s{S_SOFF}, s{S_OB}, {i * ORB}')
        for r in range(4):
            ins.append(f'buffer_store_dwordx2 v[{t+2*r}:{t+2*r+1}], v{V_OV+r}, s[{S_O}:{S_O+3}], s{S_SOFF} offen {OPT["sc"]}'.rstrip())
    else:
        for r in range(4):
            ins.append(f'v_cvt_pk_bf16_f32 v{t+r}, v{ACC(i,0)+r}, v{ACC(i,1)+r}')
        for r in range(4):
            ins.append(f'buffer_store_dword v{t+r}, v{V_OV+r}, s[{S_O}:{S_O+3}], s{S_OB2} offen {OPT["sc"]}'.rstrip())
    return ins

CBVALS = [0xbf80, 0xbf32, 0xbf06, 0xbeca, 0xbe92, 0xbe3d, 0xbdba, 0x0000,
          0x3da3, 0x3e25, 0x3e7c, 0x3ead, 0x3ee2, 0x3f10, 0x3f39, 0x3f80]

def consumer():
    L('L_consumer')
    E(f'v_mov_b32 v{V_LN}, v0')
    E(f's_and_b32 s{S_H}, s{S_WV}, 1')
    E(f's_lshr_b32 s{S_RS}, s{S_WV}, 1')
    E(f's_cmp_eq_u32 s{S_RS}, 1')
    E(f's_cselect_b64 s[{S_SW}:{S_SW+1}], -1, 0')
    E(f'v_and_b32 v5, 15, v{V_LN}')
    E(f'v_lshrrev_b32 v7, 4, v{V_LN}')
    E('v_lshrrev_b32 v6, 1, v5')
    E('v_xor_b32 v6, v6, v7')
    E('v_lshlrev_b32 v6, 4, v6')
    E(f'v_lshl_add_u32 v6, v5, 7, v6')
    E(f'v_add_u32 v{V_XB0}, {XSH}, v6')
    E(f'v_xor_b32 v{V_XB1}, 64, v{V_XB0}')
    E(f's_mul_i32 s{S_T1}, s{S_RS}, {9*2048}')
    E(f'v_add_u32 v{V_XA0}, s{S_T1}, v6')
    E(f'v_xor_b32 v{V_XA1}, 64, v{V_XA0}')
    E(f's_lshl_b32 s{S_T1}, s{S_H}, 12')
    E(f's_add_u32 s{S_T1}, s{S_T1}, {WST}')
    E(f's_lshl_b32 s{S_T2}, s{S_RS}, 11')
    E(f's_add_u32 s{S_T3}, s{S_T1}, s{S_T2}')
    E(f'v_lshlrev_b32 v6, 4, v{V_LN}')
    E(f'v_add_u32 v{V_WA01}, s{S_T3}, v6')
    E(f'v_xor_b32 v{V_WA23}, 2048, v{V_WA01}') if (WST % 4096 == 0) else None
    if WST % 4096 != 0:
        E(f's_xor_b32 s{S_T2}, s{S_T2}, 2048')
        E(f's_add_u32 s{S_T3}, s{S_T1}, s{S_T2}')
        E(f'v_add_u32 v{V_WA23}, s{S_T3}, v6')
    E(f'v_mul_u32_u24 v{V_OV}, {4*N*2}, v7')
    E(f'v_lshl_add_u32 v{V_OV}, v5, 3, v{V_OV}')
    for r in range(1, 4): E(f'v_add_u32 v{V_OV+r}, {r*N*2}, v{V_OV}')
    E(f's_lshl_b32 s{S_T1}, s{S_WV}, 12')
    E(f's_add_u32 s{S_T1}, s{S_T1}, {LUT}')
    E(f'v_lshlrev_b32 v6, 4, v{V_LN}')
    E(f'v_add_u32 v6, s{S_T1}, v6')
    E(f'v_lshrrev_b32 v1, 2, v{V_LN}')
    E('v_lshlrev_b32 v1, 1, v1')
    E('v_lshlrev_b32 v4, 3, v5')
    E('s_waitcnt lgkmcnt(0)')
    if OPT['pst']: stamp('c', True)
    srd(S_CB, 8, 32)
    E(f'buffer_load_ushort v2, v1, s[{S_CB}:{S_CB+3}], 0 offen')
    E(f's_lshl_b32 s{S_T0}, s{S_WV}, 3')
    E(f's_add_u32 s8, s8, s{S_T0}')
    E(f's_addc_u32 s9, s9, 0')
    E(f's_load_dwordx2 s[{S_T2}:{S_T3}], s[8:9], 0')
    srd(S_AM, 10, N * 2)
    srd(S_O, 12, M * N * 2)
    E(f's_lshl_b32 s{S_T0}, s{S_STRIP}, 8')
    E(f's_lshl_b32 s{S_T1}, s{S_H}, 7')
    E(f's_add_u32 s{S_T0}, s{S_T0}, s{S_T1}')
    E(f'buffer_load_dwordx2 v[8:9], v4, s[{S_AM}:{S_AM+3}], s{S_T0} offen')
    E(f's_mul_i32 s{S_OB}, s{S_RS}, 9')
    E(f's_add_u32 s{S_OB}, s{S_OB}, s{S_RB0}')
    E(f's_mul_i32 s{S_OB}, s{S_OB}, {ORB}')
    E(f's_add_u32 s{S_OB}, s{S_OB}, s{S_T0}')
    E(f's_add_u32 s{S_OB2}, s{S_RB0}, 18')
    E(f's_mul_i32 s{S_OB2}, s{S_OB2}, {ORB}')
    E(f's_add_u32 s{S_OB2}, s{S_OB2}, s{S_T0}')
    E(f's_lshl_b32 s{S_T1}, s{S_RS}, 2')
    E(f's_add_u32 s{S_OB2}, s{S_OB2}, s{S_T1}')
    NPF = 0
    if OPT['pf']:
        PFD = 250
        srd(S_X, 4, M * K * 2)
        srd(S_Q, 6, K * N * 4)
        E(f's_mul_i32 s{S_T1}, s{S_PART}, {OPT["pfw"]}')
        E(f'v_add_u32 v10, s{S_T1}, v{V_LN}')
        E('v_min_u32 v10, 255, v10')
        E('v_lshrrev_b32 v11, 2, v10')
        E('v_and_b32 v10, 3, v10')
        E(f'v_mul_u32_u24 v11, {QROW}, v11')
        E('v_lshl_add_u32 v10, v10, 7, v11')
        E(f's_lshl_b32 s{S_T1}, s{S_STRIP}, 9')
        E(f'v_add_u32 v10, s{S_T1}, v10')
        E(f's_mul_i32 s{S_T1}, s{S_STRIP}, 205')
        E(f's_lshr_b32 s{S_T1}, s{S_T1}, 10')
        E(f's_mul_i32 s{S_T1}, s{S_T1}, 5')
        E(f's_sub_u32 s{S_T1}, s{S_STRIP}, s{S_T1}')
        E(f's_mul_i32 s{S_T1}, s{S_T1}, {OPT["pfx"]}')
        E(f'v_add_u32 v11, s{S_T1}, v{V_LN}')
        E(f's_cmp_lt_u32 s{S_PART}, 2')
        E(f's_cselect_b32 s{S_T1}, 16, 0')
        E(f's_add_u32 s{S_T1}, s{S_T1}, 287')
        E(f'v_min_u32 v11, s{S_T1}, v11')
        E(f's_lshl_b32 s{S_T1}, s{S_RB0}, 4')
        E(f'v_add_u32 v11, s{S_T1}, v11')
        E(f'v_mul_u32_u24 v11, {K*2}, v11')
        E(f's_add_u32 s{S_T1}, s{S_WV}, 1')
        for k in range(2):
            E(f's_mul_i32 s68, s{S_T1}, {64*QROW}')
            E(f's_lshl_b32 s69, s{S_T1}, 7')
            E(f's_mov_b32 exec_hi, {hex((1 << (OPT["pfw"] - 32)) - 1)}')
            E(f'buffer_load_dword v{PFD}, v10, s[{S_Q}:{S_Q+3}], s68 offen {OPT["pfo"]}'.rstrip())
            E(f's_mov_b32 exec_hi, {hex((1 << (OPT["pfx"] - 32)) - 1)}')
            E(f'buffer_load_dword v{PFD}, v11, s[{S_X}:{S_X+3}], s69 offen {OPT["pfo"]}'.rstrip())
            E('s_mov_b64 exec, -1')
            E(f's_add_u32 s{S_T1}, s{S_T1}, 4')
            NPF += 2
    E(f's_waitcnt vmcnt({1 + NPF}) lgkmcnt(0)')
    if OPT['pst']: stamp('c', True)
    E(f's_lshl_b32 s68, s{S_T2}, 16')
    E(f's_and_b32 s69, s{S_T2}, 0xffff0000')
    E(f's_lshl_b32 s70, s{S_T3}, 16')
    E(f's_and_b32 s71, s{S_T3}, 0xffff0000')
    for i in range(4):
        base = 16 + 4 * i
        for c in range(4):
            E(f'v_or_b32 v{base+c}, s{68 + i}, v2')
        E(f'ds_write_b128 v6, v[{base}:{base+3}] offset:{i*1024}')
    E(f's_waitcnt vmcnt({NPF})')
    E(f's_mov_b64 exec, s[{S_SW}:{S_SW+1}]')
    E('v_swap_b32 v8, v9')
    E('s_mov_b64 exec, -1')
    E(f'v_lshlrev_b32 v{V_SC}, 16, v8')
    E(f'v_and_b32 v{V_SC+1}, 0xffff0000, v8')
    E(f'v_lshlrev_b32 v{V_SC+2}, 16, v9')
    E(f'v_and_b32 v{V_SC+3}, 0xffff0000, v9')
    E('s_waitcnt lgkmcnt(0)')
    if OPT['pst']: stamp('c', True)
    E('s_barrier')
    if OPT['prio']: E(f's_setprio {OPT["prio"]}')
    stamp('c')

    stream = []
    for t in range(9):
        if t < 8:
            order = [(i, u) for u in range(2) for i in range(10)]
        else:
            order = [(9, 0), (0, 0), (9, 1), (0, 1)] + [(i, u) for i in range(1, 9) for u in range(2)]
        for k, (i, u) in enumerate(order):
            stream.append(dict(t=t, i=i, u=u, first=(t == 0 and u == 0), newround=(k == 0), k=k,
                               last=(t == 8 and u == 1)))
    n_all = len(stream)
    for n, f in enumerate(stream): f['buf'] = V_XF + 4 * (n % NXF)
    lg = []
    def readW(t, u):
        for q in range(4):
            a = V_WA01 if q < 2 else V_WA23
            r = Wreg(u, q)
            E(f'ds_read_b128 v[{r}:{r+3}], v{a} offset:{(t & 1) * 16384 + u * 8192 + (q & 1) * 1024}')
            lg.append(('W', t, u))
    def issue_read(n):
        f = stream[n]
        if f['newround']:
            if f['t'] > 0:
                E('s_waitcnt lgkmcnt(0)'); lg.clear()
            E('s_barrier')
            if OPT['cst'] or f['t'] in (0, 1, 2, 3, 8): stamp('c')
            readW(f['t'], 0)
            if f['t'] == 0: readW(0, 1)
        if f['newround']:
            E(f'v_add_u32 v{V_XC0}, {(f["t"] % 3) * XSTG}, v{V_XA0}')
            E(f'v_add_u32 v{V_XC1}, {(f["t"] % 3) * XSTG}, v{V_XA1}')
        if f['i'] < 9:
            a = V_XC0 if f['u'] == 0 else V_XC1
            off = f['i'] * 2048
        else:
            a = V_XB0 if f['u'] == 0 else V_XB1
            off = (f['t'] & 1) * 2048
        if OPT['noread']: return
        E(f'ds_read_b128 v[{f["buf"]}:{f["buf"]+3}], v{a} offset:{off}')
        lg.append(('X', n))
    def wait_tags(tags):
        idx = None
        for k, tag in enumerate(lg):
            if tag in tags: idx = k
        if idx is None: return
        remain = len(lg) - idx - 1
        E(f's_waitcnt lgkmcnt({min(remain, 15)})')
        del lg[:idx + 1]

    pending = []
    for n in range(LOOK): issue_read(n)
    done_ep = []
    for n in range(n_all):
        f = stream[n]
        if n + LOOK < n_all: issue_read(n + LOOK)
        if f['newround'] and f['t'] > 0:
            readW(f['t'], 1)
        wait_tags([('X', n), ('W', f['t'], f['u'])])
        nq = 4 if f['i'] < 9 else 2
        for q in range(nq):
            a = ACC(f['i'], q); w = Wreg(f['u'], q)
            c = '0' if f['first'] else f'v[{a}:{a+3}]'
            if out[-1].strip().startswith('v_pk_mul') and OPT['pknop'] >= 0: E(f's_nop {OPT["pknop"]}')
            if not OPT['nomfma']:
                E(f'v_mfma_f32_16x16x32_bf16 v[{a}:{a+3}], v[{f["buf"]}:{f["buf"]+3}], v[{w}:{w+3}], {c}')
            for _ in range(4):
                if pending: E(pending.pop(0))
        if f['t'] == 8:
            if n >= 1 and stream[n-1]['t'] == 8 and stream[n-1]['last'] and stream[n-1]['i'] == 9:
                pass
            if n >= 1 and stream[n-1]['t'] == 8 and stream[n-1]['last'] and stream[n-1]['i'] < 9:
                i = stream[n-1]['i']
                pending.extend(epilogue_instrs(i, i & 1))
    while pending: E(pending.pop(0))
    E(f's_cmp_lt_u32 s{S_PART}, 2')
    E('s_cbranch_scc0 L_c_nosh')
    for s in epilogue_instrs(9, 1): E(s)
    L('L_c_nosh')
    E('s_nop 7')
    for s in epilogue_instrs(8, 0): E(s)
    if OPT['stamps']:
        stamp('c')
        E('s_waitcnt vmcnt(0)')
        stamp('c')
        dump_stamps(0)
    rep_tail(V_LN)
    E('s_endpgm')

def rep_tail(ln):
    if OPT['rep'] <= 1: return
    E('s_waitcnt vmcnt(0) lgkmcnt(0)')
    E('s_barrier')
    E('s_add_u32 s90, s90, 1')
    E(f's_lshl_b32 s91, s{S_WV}, 6')
    E(f'v_add_u32 v0, s91, v{ln}')
    E('s_setprio 0')
    E(f's_cmp_lt_u32 s90, {OPT["rep"]}')
    E('s_cbranch_scc1 L_start')

def dump_stamps(role):
    stamp_flush()
    E('s_memrealtime s[92:93]')
    E('s_waitcnt lgkmcnt(0)')
    E('s_sub_u32 s92, s92, s94')
    E(f'v_writelane_b32 v{VSTAMP}, s92, {15 if not OPT["cst"] else 31}')
    if role == 0 and OPT['gst']:
        E(f's_cmp_lg_u32 s{S_WV}, 0')
        E('s_cbranch_scc1 L_nogst')
        E('v_mov_b32 v1, 0')
        E(f'v_readlane_b32 s70, v{VSTAMP}, {OPT["gst"]}')
        E(f'v_readlane_b32 s71, v{VSTAMP}, 1')
        E('v_writelane_b32 v1, s70, 0')
        E('v_writelane_b32 v1, s94, 1')
        E('s_not_b32 s93, s94')
        E('v_writelane_b32 v1, s93, 2')
        E('s_add_u32 s93, s92, s94')
        E('v_writelane_b32 v1, s93, 3')
        E('v_writelane_b32 v1, s71, 4')
        E('s_not_b32 s93, s70')
        E('v_writelane_b32 v1, s93, 5')
        E('v_mbcnt_lo_u32_b32 v2, -1, 0')
        E('v_mbcnt_hi_u32_b32 v2, -1, v2')
        E('v_lshlrev_b32 v2, 2, v2')
        E('v_cmp_gt_u32 vcc, 24, v2')
        E('s_and_saveexec_b64 s[70:71], vcc')
        E(f'global_atomic_umax v2, v1, s[{S_DBG}:{S_DBG+1}] offset:{192}')
        E('s_waitcnt vmcnt(0)')
        E('s_mov_b64 exec, -1')
        L('L_nogst')
    E('s_cmp_lg_u32 s2, 0')
    E(f's_cbranch_scc1 L_nost{role}')
    E(f's_cmp_lg_u32 s{S_WV}, {4*role}')
    E(f's_cbranch_scc1 L_nost{role}')
    E('v_mbcnt_lo_u32_b32 v1, -1, 0')
    E('v_mbcnt_hi_u32_b32 v1, -1, v1')
    E('v_lshlrev_b32 v1, 2, v1')
    E(f'v_cmp_gt_u32 vcc, {64 if (role == 1 and OPT["gst"]) else 128}, v1')
    E('s_and_saveexec_b64 s[70:71], vcc')
    E(f'global_store_dword v1, v{VSTAMP}, s[{S_DBG}:{S_DBG+1}] offset:{128*role}')
    E('s_waitcnt vmcnt(0)')
    L(f'L_nost{role}')

V_Q = 0
V_QV, V_XV, V_LB, V_WA = 96, 97, 98, 99
P_LN = 100
V_QC = 101
lblc = [0]
def producer():
    L('L_producer')
    stamp_idx[0] = 0
    E(f'v_mov_b32 v{P_LN}, v0')
    E(f's_sub_u32 s{S_T0}, s{S_WV}, 4')
    E(f's_and_b32 s{S_H}, s{S_T0}, 1')
    E(f's_lshr_b32 s{S_RS}, s{S_T0}, 1')
    E(f's_mul_i32 s{S_T1}, s{S_PART}, {OPT["rotp"]}')
    E(f's_mul_i32 s{S_T2}, s{S_STRIP}, {OPT["rots"]}')
    E(f's_add_u32 s{S_T1}, s{S_T1}, s{S_T2}')
    rm = OPT['rotm']
    E(f's_mul_i32 s{S_T2}, s{S_T1}, {-(-65536 // rm)}')
    E(f's_lshr_b32 s{S_T2}, s{S_T2}, 16')
    E(f's_mul_i32 s{S_T2}, s{S_T2}, {rm}')
    E(f's_sub_u32 s{S_T1}, s{S_T1}, s{S_T2}')
    if OPT['rotk'] != 1: E(f's_mul_i32 s{S_T1}, s{S_T1}, {OPT["rotk"]}')
    assert (rm - 1) * OPT['rotk'] <= 8
    E(f's_add_u32 s{S_XB}, s{S_RB0}, s{S_RS}')
    E(f's_mul_i32 s{S_XB}, s{S_XB}, {XRB}')
    E(f's_cmp_lt_u32 s{S_PART}, 2')
    E(f's_cselect_b32 s{S_NRB}, 1, 0')
    E(f's_cmp_eq_u32 s{S_RS}, 0')
    E(f's_cselect_b32 s{S_NRB}, s{S_NRB}, 0')
    E(f's_lshl_b32 s{S_T2}, s{S_T1}, 7')
    E(f's_add_u32 s{S_XK}, s{S_XB}, s{S_T2}')
    E(f's_mul_i32 s{S_WK}, s{S_T1}, {64*QROW}')
    E(f's_lshl_b32 s{S_T2}, s{S_T0}, 4')
    E(f's_mul_i32 s{S_T2}, s{S_T2}, {QROW}')
    E(f's_lshl_b32 s{S_T3}, s{S_STRIP}, 9')
    E(f's_add_u32 s{S_T2}, s{S_T2}, s{S_T3}')
    E(f'v_lshrrev_b32 v1, 5, v{P_LN}')
    E(f'v_mul_u32_u24 v2, {8*QROW}, v1')
    E(f'v_and_b32 v3, 31, v{P_LN}')
    E('v_lshl_add_u32 v2, v3, 4, v2')
    E(f'v_add_u32 v{V_QV}, s{S_T2}, v2')
    for jj in range(8):
        E(f's_mov_b32 s{S_JJ+jj}, {jj*QROW}')
    E(f'v_lshrrev_b32 v4, 3, v{P_LN}')
    E(f's_lshl_b32 s{S_T3}, s{S_H}, 3')
    E(f'v_add_u32 v4, s{S_T3}, v4')
    E('v_lshrrev_b32 v5, 1, v4')
    E(f'v_and_b32 v6, 7, v{P_LN}')
    E('v_xor_b32 v5, v5, v6')
    E('v_lshlrev_b32 v5, 4, v5')
    E(f'v_mul_u32_u24 v4, {K*2}, v4')
    E(f'v_add_u32 v{V_XV}, v4, v5')
    E(f's_lshl_b32 s{S_XL}, s{S_H}, 10')
    E(f's_lshl_b32 s{S_T3}, s{S_RS}, 11')
    E(f's_add_u32 s{S_XL}, s{S_XL}, s{S_T3}')
    E(f's_lshl_b32 s{S_XL2}, s{S_H}, 10')
    E(f's_add_u32 s{S_XL2}, s{S_XL2}, {XSH}')
    E(f'v_add_u32 v{V_QC}, s{S_WK}, v{V_QV}')
    E('s_waitcnt lgkmcnt(0)')
    if OPT['pst']: stamp('p', True)
    srd(S_Q, 6, K * N * 4)

    vm = []
    def opsW(t):
        b = V_Q + 32 * (t % 3)
        g = []
        if OPT['now'] and t > 1: return g
        for jj in range(8):
            pre = []
            if jj == 0 and t > 0: pre = [f'v_add_u32 v{V_QC}, s{S_WK+t}, v{V_QV}']
            g.append((pre + [f'buffer_load_dwordx4 v[{b+4*jj}:{b+4*jj+3}], v{V_QC}, s[{S_Q}:{S_Q+3}], s{S_JJ+jj} offen {OPT["qnt"]}'.rstrip()], ('W', t), False))
        return g
    def opsX(t):
        g = []
        if OPT['nox'] and t > 0: return g
        for z in range(9):
            ins = [f's_add_u32 m0, s{S_XL}, {(t % 3) * XSTG + z * 4096}',
                   f's_add_u32 s{S_SOFF}, s{S_XK+t}, {2 * z * XRB}',
                   f'buffer_load_dwordx4 v{V_XV}, s[{S_X}:{S_X+3}], s{S_SOFF} offen lds']
            g.append((ins, ('X', t), False))
        return g
    def opsS(t):
        if OPT['nox'] and t > 0: return []
        lblc[0] += 1
        ins = [f's_cmp_eq_u32 s{S_NRB}, 1', f's_cbranch_scc0 L_sk{lblc[0]}',
               f's_add_u32 m0, s{S_XL2}, {(t & 1) * 2048}',
               f's_add_u32 s{S_SOFF}, s{S_XK+t}, {18 * XRB}',
               f'buffer_load_dwordx4 v{V_XV}, s[{S_X}:{S_X+3}], s{S_SOFF} offen lds',
               f'@L_sk{lblc[0]}']
        return [(ins, ('S', t), True)]
    def ops(tok):
        return {'W': opsW, 'X': opsX, 'S': opsS}[tok[0]](int(tok[1:]))
    def emit_group(g):
        for s_ in g[0]:
            if s_.startswith('@'): L(s_[1:])
            else: E(s_)
        vm.append((g[1], g[2]))
    def vwait(*tags):
        idx = None
        for k, (tg, opt) in enumerate(vm):
            if tg in tags: idx = k
        if idx is None: return
        rest = vm[idx + 1:]
        n = sum(1 for (tg, opt) in rest if not opt)
        E(f's_waitcnt vmcnt({n})')
        del vm[:idx + 1]
    def landed(tag): return all(tg != tag for tg, _ in vm)
    def deq_instrs(t):
        b = V_Q + 32 * (t % 3)
        ins = []
        if OPT['nodeq'] and t > 0: return ins
        for half in range(2):
            es = (2 * half, 2 * half + 1)
            for e in es:
                for d in range(4):
                    lo = b + 4 * (2 * d) + e
                    ins.append(f'v_lshl_add_u32 v{lo}, v{lo}, 6, v{V_LB}')
            for e in es:
                for d in range(4):
                    lo = b + 4 * (2 * d) + e; hi = b + 4 * (2 * d + 1) + e
                    ins.append(f'v_lshl_add_u32 v{lo}, v{hi}, 10, v{lo}')
        rd = []
        for e in range(4):
            for d in range(4):
                lo = b + 4 * (2 * d) + e
                rd.append(f'ds_read_b32 v{b + 4*(2*e+1) + d}, v{lo}')
        if not OPT['nolut']: ins += rd
        if OPT['nowr']: return ins + ['s_waitcnt lgkmcnt(0)']
        for e in range(4):
            r = b + 4 * (2 * e + 1)
            ins.append(f's_waitcnt lgkmcnt({(3 - e) * 4 + e})')
            ins.append(f'ds_write_b128 v{V_WA}, v[{r}:{r+3}] offset:{(t & 1) * 16384 + e * 1024}')
        return ins
    def interleave(groups, ins, per=None):
        n = len(groups)
        if n == 0:
            for s_ in ins: E(s_)
            return
        if per is None: per = OPT['per'] if OPT['per'] else -(-len(ins) // n)
        k = 0
        for g in groups:
            emit_group(g)
            for s_ in ins[k:k+per]: E(s_)
            k += per
        for s_ in ins[k:]: E(s_)

    for g in opsW(0): emit_group(g)
    srd(S_X, 4, M * K * 2)
    for g in opsX(0) + opsS(0): emit_group(g)
    if OPT['pst']: stamp('p', True)
    for t in range(1, 9):
        E(f's_add_u32 s{S_T1}, s{S_T1}, 1')
        E(f's_cmp_eq_u32 s{S_T1}, 9')
        E(f's_cselect_b32 s{S_T1}, 0, s{S_T1}')
        E(f's_lshl_b32 s{S_T2}, s{S_T1}, 7')
        E(f's_add_u32 s{S_XK+t}, s{S_XB}, s{S_T2}')
        E(f's_mul_i32 s{S_WK+t}, s{S_T1}, {64*QROW}')
    E(f'v_and_b32 v{V_LB}, 31, v{P_LN}')
    T0, T1 = 102, 103
    E(f'v_lshrrev_b32 v{T0}, 4, v{V_LB}')
    E(f'v_and_b32 v{T1}, 15, v{V_LB}')
    E(f'v_lshlrev_b32 v{T1}, 4, v{T1}')
    E(f'v_lshl_add_u32 v{T1}, v{T0}, 12, v{T1}')
    E(f'v_lshrrev_b32 v{T0}, 5, v{P_LN}')
    E(f'v_lshl_add_u32 v{T1}, v{T0}, 8, v{T1}')
    E(f's_lshl_b32 s{S_T3}, s{S_H}, 9')
    E(f's_lshl_b32 s{S_T2}, s{S_RS}, 13')
    E(f's_add_u32 s{S_T3}, s{S_T3}, s{S_T2}')
    E(f's_add_u32 s{S_T3}, s{S_T3}, {WST}')
    E(f'v_add_u32 v{V_WA}, s{S_T3}, v{T1}')
    E(f'v_and_b32 v{V_LB}, 15, v{V_LB}')
    E(f'v_lshlrev_b32 v{V_LB}, 2, v{V_LB}')
    E(f'v_add_u32 v{V_LB}, {LUT}, v{V_LB}')
    if OPT['pprio']: E(f's_setprio {OPT["pprio"]}')
    stamp('p')
    E('s_barrier')
    vwait(('W', 0))
    stamp('p')
    interleave(opsW(1), deq_instrs(0))
    vwait(('X', 0), ('S', 0))
    E('s_waitcnt lgkmcnt(0)')
    stamp('p')
    E('s_barrier')
    stamp('p')
    sched = [r.split() for r in OPT['sched'].replace('_', ' ').split(';')]
    for r in range(0, 8):
        toks = sched[r]
        k = toks.index('D')
        for tok in toks[:k]:
            for g in ops(tok): emit_group(g)
        vwait(('W', r + 1))
        gs = []
        for tok in toks[k+1:]: gs += ops(tok)
        interleave(gs, deq_instrs(r + 1), per=(OPT['per'] or max(4, -(-56 // max(1, len(gs))))))
        if OPT['cst']: stamp('p')
        vwait(('X', r + 1), ('S', r + 1))
        E('s_waitcnt lgkmcnt(0)')
        if OPT['cst']: stamp('p')
        E('s_barrier')
        if OPT['cst'] or r in (0, 1, 2, 7): stamp('p')
    if OPT['stamps']:
        stamp('p')
        dump_stamps(1)
    rep_tail(P_LN)
    E('s_endpgm')

header()
prologue()
consumer()
producer()
L('L_end')
E('s_endpgm')
footer()
print('\n'.join(out))
```

```python
import sys
OPT = dict(stamps=0, prio=1, sc='', rotp=4, rots=1, cst=0, pst=0, rep=1, look=3, nxf=5, noepi=0, nomfma=0,
           sched='S1 X1 D W2 X2;S2 D W3 X3 W4;D S3 X4 W5;D S4 X5 W6;D S5 X6 W7;D S6 X7 W8;D S7 X8;D S8', ord='xw', qnt='', per=0, pprio=0, hard=0, pknop=1, noread=0, nodeq=0, nox=0, now=0, nolut=0, nowr=0, gst=0, rotm=9, rotk=1, duty=0, pre1='', pre2='', pf=0, pfw=37, pfx=61, pfo='')
for a in sys.argv[1:]:
    k, v = a.split('=')
    OPT[k] = int(v) if v.lstrip('-').isdigit() and k not in ('sched', 'pre1', 'pre2') else v
NAME = 'standalone__normalfloat_lut_codebook_lookup__prompt_kernel'
out = []
def E(s): out.append('    ' + s)
def L(s): out.append(s + ':')

K, N, M = 576, 4608, 2048
QROW = N * 4
XRB = 16 * K * 2
ORB = 16 * N * 2
XSTG = 18 * 2048
XST = 0
XSH = 3 * XSTG
WST = XSH + 4096
LUT = WST + 32768
LDS_TOTAL = LUT + 16384

S_X, S_Q, S_O, S_CB, S_AM = 16, 20, 24, 28, 32
S_STRIP, S_PART, S_RB0, S_NRB, S_WV = 36, 37, 38, 39, 40
S_OB = 41
S_T0, S_T1, S_T2, S_T3 = 42, 43, 54, 55
S_JJ = 44
S_XB, S_XL, S_H, S_RS = 52, 53, 56, 57
S_SW = 58
S_DBG = 60
S_ST = 62
S_ST0 = 64
S_SOFF = 66
S_OB2 = 67
S_XL2 = 41
S_XK = 72
S_WK = 81
VSTAMP = 255

stamp_idx = [0]
def stamp(role, sync=False):
    if not OPT['stamps']: return
    i = stamp_idx[0]; stamp_idx[0] += 1
    if i > 0:
        E(f's_sub_u32 s{S_ST}, s{S_ST}, s{S_ST0}')
        E(f'v_writelane_b32 v{VSTAMP}, s{S_ST}, {i-1}')
    E(f's_memtime s[{S_ST}:{S_ST+1}]')
    if sync or role == 'p': E('s_waitcnt lgkmcnt(0)')
def stamp_flush():
    i = stamp_idx[0]
    E('s_waitcnt lgkmcnt(0)')
    E(f's_sub_u32 s{S_ST}, s{S_ST}, s{S_ST0}')
    E(f'v_writelane_b32 v{VSTAMP}, s{S_ST}, {i-1}')

def header():
    out.append('; Kernarg: 0 x(1,2048,576) bf16 | 8 qw(576,4608) i32 | 16 codebook(16) bf16 | 24 absmax(1,4608) bf16 | 32 out | 40 debug | 48 ws')
    out.append(f'; @launch grid=(256,1,1) block=(512,1,1) lds={LDS_TOTAL}')
    out.append('.amdgcn_target "amdgcn-amd-amdhsa--gfx950"')
    out.append('.text')
    out.append(f'.globl {NAME}')
    out.append('.p2align 8')
    out.append(f'.type {NAME},@function')
    L(NAME)

def footer():
    out.append('.section .rodata,"a"')
    out.append('.p2align 6')
    out.append(f'.amdhsa_kernel {NAME}')
    for s in ['next_free_vgpr 256', 'next_free_sgpr 96', 'accum_offset 256', 'group_segment_fixed_size 0',
              'kernarg_size 56', 'user_sgpr_count 2', 'user_sgpr_kernarg_segment_ptr 1',
              'system_sgpr_workgroup_id_x 1']:
        out.append('  .amdhsa_' + s)
    out.append('.end_amdhsa_kernel')

def srd(d, p, nbytes):
    E(f's_mov_b32 s{d}, s{p}')
    E(f's_and_b32 s{d+1}, s{p+1}, 0xffff')
    E(f's_mov_b32 s{d+2}, {nbytes}')
    E(f's_mov_b32 s{d+3}, 0x20000')

def prologue():
    E('s_cmp_ge_u32 s2, 256')
    E('s_cbranch_scc1 L_end')
    if OPT['rep'] > 1:
        E('s_mov_b32 s90, 0')
        L('L_start')
    E('s_load_dwordx4 s[4:7], s[0:1], 0')
    E('s_load_dwordx4 s[8:11], s[0:1], 16')
    E('s_load_dwordx2 s[12:13], s[0:1], 32')
    if OPT['stamps']:
        E(f's_load_dwordx2 s[{S_DBG}:{S_DBG+1}], s[0:1], 40')
        E(f's_memtime s[{S_ST0}:{S_ST0+1}]')
        E('s_memrealtime s[94:95]')
    E(f's_and_b32 s{S_T0}, s2, 7')
    E(f's_lshl_b32 s{S_T0}, s{S_T0}, 5')
    E(f's_lshr_b32 s{S_T1}, s2, 3')
    E(f's_add_u32 s{S_T0}, s{S_T0}, s{S_T1}')
    E(f's_cmp_ge_u32 s{S_T0}, 252')
    E('s_cbranch_scc1 L_end')
    E(f's_mul_i32 s{S_STRIP}, s{S_T0}, 293')
    E(f's_lshr_b32 s{S_STRIP}, s{S_STRIP}, 11')
    E(f's_mul_i32 s{S_T1}, s{S_STRIP}, 7')
    E(f's_sub_u32 s{S_PART}, s{S_T0}, s{S_T1}')
    E(f's_mul_i32 s{S_RB0}, s{S_PART}, 18')
    E(f's_min_u32 s{S_T1}, s{S_PART}, 2')
    E(f's_add_u32 s{S_RB0}, s{S_RB0}, s{S_T1}')
    E('v_lshrrev_b32 v1, 6, v0')
    E('v_and_b32 v0, 63, v0')
    E(f'v_readfirstlane_b32 s{S_WV}, v1')
    if OPT['stamps']:
        E(f'v_mov_b32 v{VSTAMP}, 0')
    E('s_nop 3')
    E(f's_cmp_ge_u32 s{S_WV}, 4')
    E('s_cbranch_scc1 L_producer')

V_ACC = 0
V_W = 152
V_XF = 184
NXF = OPT['nxf']; LOOK = OPT['look']
V_SC = V_XF + 4 * NXF
V_TMP = V_SC + 6
V_XA0, V_XA1, V_XB0, V_XB1, V_WA01, V_WA23 = [V_TMP + 16 + i for i in range(6)]
V_OV = V_TMP + 22
V_LN = V_TMP + 26
V_XC0, V_XC1 = V_TMP + 27, V_TMP + 28
assert V_XC1 < 255 and V_TMP % 2 == 0 and V_SC % 2 == 0

def ACC(i, q): return (16 * i + 4 * q) if i < 9 else 144 + 4 * q
def Wreg(u, q): return V_W + 16 * u + 4 * q

def epilogue_instrs(i, sel):
    t = V_TMP + 8 * sel
    ins = []
    if OPT['noepi']: return ins
    nq = 4 if i < 9 else 2
    for q in range(nq):
        for r in (0, 2):
            a = ACC(i, q) + r
            sp = V_SC + (q & ~1)
            sel = 'op_sel_hi:[1,0]' if (q & 1) == 0 else 'op_sel:[0,1] op_sel_hi:[1,1]'
            ins.append(f'v_pk_mul_f32 v[{a}:{a+1}], v[{a}:{a+1}], v[{sp}:{sp+1}] {sel}')
    if i < 9:
        for r in range(4):
            ins.append(f'v_cvt_pk_bf16_f32 v{t+2*r}, v{ACC(i,0)+r}, v{ACC(i,1)+r}')
            ins.append(f'v_cvt_pk_bf16_f32 v{t+2*r+1}, v{ACC(i,2)+r}, v{ACC(i,3)+r}')
        grp = [f's_mov_b64 exec, s[{S_SW}:{S_SW+1}]']
        for r in range(4):
            grp.append(f'v_swap_b32 v{t+2*r}, v{t+2*r+1}')
        grp.append('s_mov_b64 exec, -1')
        ins.append('\n    '.join(grp))
        ins.append(f's_add_u32 s{S_SOFF}, s{S_OB}, {i * ORB}')
        for r in range(4):
            ins.append(f'buffer_store_dwordx2 v[{t+2*r}:{t+2*r+1}], v{V_OV+r}, s[{S_O}:{S_O+3}], s{S_SOFF} offen {OPT["sc"]}'.rstrip())
    else:
        for r in range(4):
            ins.append(f'v_cvt_pk_bf16_f32 v{t+r}, v{ACC(i,0)+r}, v{ACC(i,1)+r}')
        for r in range(4):
            ins.append(f'buffer_store_dword v{t+r}, v{V_OV+r}, s[{S_O}:{S_O+3}], s{S_OB2} offen {OPT["sc"]}'.rstrip())
    return ins

CBVALS = [0xbf80, 0xbf32, 0xbf06, 0xbeca, 0xbe92, 0xbe3d, 0xbdba, 0x0000,
          0x3da3, 0x3e25, 0x3e7c, 0x3ead, 0x3ee2, 0x3f10, 0x3f39, 0x3f80]

def consumer():
    L('L_consumer')
    E(f'v_mov_b32 v{V_LN}, v0')
    E(f's_and_b32 s{S_H}, s{S_WV}, 1')
    E(f's_lshr_b32 s{S_RS}, s{S_WV}, 1')
    E(f's_cmp_eq_u32 s{S_RS}, 1')
    E(f's_cselect_b64 s[{S_SW}:{S_SW+1}], -1, 0')
    E(f'v_and_b32 v5, 15, v{V_LN}')
    E(f'v_lshrrev_b32 v7, 4, v{V_LN}')
    E('v_lshrrev_b32 v6, 1, v5')
    E('v_xor_b32 v6, v6, v7')
    E('v_lshlrev_b32 v6, 4, v6')
    E(f'v_lshl_add_u32 v6, v5, 7, v6')
    E(f'v_add_u32 v{V_XB0}, {XSH}, v6')
    E(f'v_xor_b32 v{V_XB1}, 64, v{V_XB0}')
    E(f's_mul_i32 s{S_T1}, s{S_RS}, {9*2048}')
    E(f'v_add_u32 v{V_XA0}, s{S_T1}, v6')
    E(f'v_xor_b32 v{V_XA1}, 64, v{V_XA0}')
    E(f's_lshl_b32 s{S_T1}, s{S_H}, 12')
    E(f's_add_u32 s{S_T1}, s{S_T1}, {WST}')
    E(f's_lshl_b32 s{S_T2}, s{S_RS}, 11')
    E(f's_add_u32 s{S_T3}, s{S_T1}, s{S_T2}')
    E(f'v_lshlrev_b32 v6, 4, v{V_LN}')
    E(f'v_add_u32 v{V_WA01}, s{S_T3}, v6')
    E(f'v_xor_b32 v{V_WA23}, 2048, v{V_WA01}') if (WST % 4096 == 0) else None
    if WST % 4096 != 0:
        E(f's_xor_b32 s{S_T2}, s{S_T2}, 2048')
        E(f's_add_u32 s{S_T3}, s{S_T1}, s{S_T2}')
        E(f'v_add_u32 v{V_WA23}, s{S_T3}, v6')
    E(f'v_mul_u32_u24 v{V_OV}, {4*N*2}, v7')
    E(f'v_lshl_add_u32 v{V_OV}, v5, 3, v{V_OV}')
    for r in range(1, 4): E(f'v_add_u32 v{V_OV+r}, {r*N*2}, v{V_OV}')
    E(f's_lshl_b32 s{S_T1}, s{S_WV}, 12')
    E(f's_add_u32 s{S_T1}, s{S_T1}, {LUT}')
    E(f'v_lshlrev_b32 v6, 4, v{V_LN}')
    E(f'v_add_u32 v6, s{S_T1}, v6')
    E(f'v_lshrrev_b32 v1, 2, v{V_LN}')
    E('v_lshlrev_b32 v1, 1, v1')
    E('v_lshlrev_b32 v4, 3, v5')
    E('s_waitcnt lgkmcnt(0)')
    if OPT['pst']: stamp('c', True)
    srd(S_CB, 8, 32)
    E(f'buffer_load_ushort v2, v1, s[{S_CB}:{S_CB+3}], 0 offen')
    E(f's_lshl_b32 s{S_T0}, s{S_WV}, 3')
    E(f's_add_u32 s8, s8, s{S_T0}')
    E(f's_addc_u32 s9, s9, 0')
    E(f's_load_dwordx2 s[{S_T2}:{S_T3}], s[8:9], 0')
    srd(S_AM, 10, N * 2)
    srd(S_O, 12, M * N * 2)
    E(f's_lshl_b32 s{S_T0}, s{S_STRIP}, 8')
    E(f's_lshl_b32 s{S_T1}, s{S_H}, 7')
    E(f's_add_u32 s{S_T0}, s{S_T0}, s{S_T1}')
    E(f'buffer_load_dwordx2 v[8:9], v4, s[{S_AM}:{S_AM+3}], s{S_T0} offen')
    E(f's_mul_i32 s{S_OB}, s{S_RS}, 9')
    E(f's_add_u32 s{S_OB}, s{S_OB}, s{S_RB0}')
    E(f's_mul_i32 s{S_OB}, s{S_OB}, {ORB}')
    E(f's_add_u32 s{S_OB}, s{S_OB}, s{S_T0}')
    E(f's_add_u32 s{S_OB2}, s{S_RB0}, 18')
    E(f's_mul_i32 s{S_OB2}, s{S_OB2}, {ORB}')
    E(f's_add_u32 s{S_OB2}, s{S_OB2}, s{S_T0}')
    E(f's_lshl_b32 s{S_T1}, s{S_RS}, 2')
    E(f's_add_u32 s{S_OB2}, s{S_OB2}, s{S_T1}')
    NPF = 0
    if OPT['pf']:
        PFD = 250
        srd(S_X, 4, M * K * 2)
        srd(S_Q, 6, K * N * 4)
        E(f's_mul_i32 s{S_T1}, s{S_PART}, {OPT["pfw"]}')
        E(f'v_add_u32 v10, s{S_T1}, v{V_LN}')
        E('v_min_u32 v10, 255, v10')
        E('v_lshrrev_b32 v11, 2, v10')
        E('v_and_b32 v10, 3, v10')
        E(f'v_mul_u32_u24 v11, {QROW}, v11')
        E('v_lshl_add_u32 v10, v10, 7, v11')
        E(f's_lshl_b32 s{S_T1}, s{S_STRIP}, 9')
        E(f'v_add_u32 v10, s{S_T1}, v10')
        E(f's_mul_i32 s{S_T1}, s{S_STRIP}, 205')
        E(f's_lshr_b32 s{S_T1}, s{S_T1}, 10')
        E(f's_mul_i32 s{S_T1}, s{S_T1}, 5')
        E(f's_sub_u32 s{S_T1}, s{S_STRIP}, s{S_T1}')
        E(f's_mul_i32 s{S_T1}, s{S_T1}, {OPT["pfx"]}')
        E(f'v_add_u32 v11, s{S_T1}, v{V_LN}')
        E(f's_cmp_lt_u32 s{S_PART}, 2')
        E(f's_cselect_b32 s{S_T1}, 16, 0')
        E(f's_add_u32 s{S_T1}, s{S_T1}, 287')
        E(f'v_min_u32 v11, s{S_T1}, v11')
        E(f's_lshl_b32 s{S_T1}, s{S_RB0}, 4')
        E(f'v_add_u32 v11, s{S_T1}, v11')
        E(f'v_mul_u32_u24 v11, {K*2}, v11')
        E(f's_add_u32 s{S_T1}, s{S_WV}, 1')
        for k in range(2):
            E(f's_mul_i32 s68, s{S_T1}, {64*QROW}')
            E(f's_lshl_b32 s69, s{S_T1}, 7')
            E(f's_mov_b32 exec_hi, {hex((1 << (OPT["pfw"] - 32)) - 1)}')
            E(f'buffer_load_dword v{PFD}, v10, s[{S_Q}:{S_Q+3}], s68 offen {OPT["pfo"]}'.rstrip())
            E(f's_mov_b32 exec_hi, {hex((1 << (OPT["pfx"] - 32)) - 1)}')
            E(f'buffer_load_dword v{PFD}, v11, s[{S_X}:{S_X+3}], s69 offen {OPT["pfo"]}'.rstrip())
            E('s_mov_b64 exec, -1')
            E(f's_add_u32 s{S_T1}, s{S_T1}, 4')
            NPF += 2
    E(f's_waitcnt vmcnt({1 + NPF}) lgkmcnt(0)')
    if OPT['pst']: stamp('c', True)
    E(f's_lshl_b32 s68, s{S_T2}, 16')
    E(f's_and_b32 s69, s{S_T2}, 0xffff0000')
    E(f's_lshl_b32 s70, s{S_T3}, 16')
    E(f's_and_b32 s71, s{S_T3}, 0xffff0000')
    for i in range(4):
        base = 16 + 4 * i
        for c in range(4):
            E(f'v_or_b32 v{base+c}, s{68 + i}, v2')
        E(f'ds_write_b128 v6, v[{base}:{base+3}] offset:{i*1024}')
    E(f's_waitcnt vmcnt({NPF})')
    E(f's_mov_b64 exec, s[{S_SW}:{S_SW+1}]')
    E('v_swap_b32 v8, v9')
    E('s_mov_b64 exec, -1')
    E(f'v_lshlrev_b32 v{V_SC}, 16, v8')
    E(f'v_and_b32 v{V_SC+1}, 0xffff0000, v8')
    E(f'v_lshlrev_b32 v{V_SC+2}, 16, v9')
    E(f'v_and_b32 v{V_SC+3}, 0xffff0000, v9')
    E('s_waitcnt lgkmcnt(0)')
    if OPT['pst']: stamp('c', True)
    E('s_barrier')
    if OPT['prio']: E(f's_setprio {OPT["prio"]}')
    stamp('c')

    stream = []
    for t in range(9):
        if t < 8:
            order = [(i, u) for u in range(2) for i in range(10)]
        else:
            order = [(9, 0), (0, 0), (9, 1), (0, 1)] + [(i, u) for i in range(1, 9) for u in range(2)]
        for k, (i, u) in enumerate(order):
            stream.append(dict(t=t, i=i, u=u, first=(t == 0 and u == 0), newround=(k == 0), k=k,
                               last=(t == 8 and u == 1)))
    n_all = len(stream)
    for n, f in enumerate(stream): f['buf'] = V_XF + 4 * (n % NXF)
    lg = []
    def readW(t, u):
        for q in range(4):
            a = V_WA01 if q < 2 else V_WA23
            r = Wreg(u, q)
            E(f'ds_read_b128 v[{r}:{r+3}], v{a} offset:{(t & 1) * 16384 + u * 8192 + (q & 1) * 1024}')
            lg.append(('W', t, u))
    def issue_read(n):
        f = stream[n]
        if f['newround']:
            if f['t'] > 0:
                E('s_waitcnt lgkmcnt(0)'); lg.clear()
            E('s_barrier')
            if OPT['cst'] or f['t'] in (0, 1, 2, 3, 8): stamp('c')
            readW(f['t'], 0)
            if f['t'] == 0: readW(0, 1)
        if f['newround']:
            E(f'v_add_u32 v{V_XC0}, {(f["t"] % 3) * XSTG}, v{V_XA0}')
            E(f'v_add_u32 v{V_XC1}, {(f["t"] % 3) * XSTG}, v{V_XA1}')
        if f['i'] < 9:
            a = V_XC0 if f['u'] == 0 else V_XC1
            off = f['i'] * 2048
        else:
            a = V_XB0 if f['u'] == 0 else V_XB1
            off = (f['t'] & 1) * 2048
        if OPT['noread']: return
        E(f'ds_read_b128 v[{f["buf"]}:{f["buf"]+3}], v{a} offset:{off}')
        lg.append(('X', n))
    def wait_tags(tags):
        idx = None
        for k, tag in enumerate(lg):
            if tag in tags: idx = k
        if idx is None: return
        remain = len(lg) - idx - 1
        E(f's_waitcnt lgkmcnt({min(remain, 15)})')
        del lg[:idx + 1]

    pending = []
    for n in range(LOOK): issue_read(n)
    done_ep = []
    for n in range(n_all):
        f = stream[n]
        if n + LOOK < n_all: issue_read(n + LOOK)
        if f['newround'] and f['t'] > 0:
            readW(f['t'], 1)
        wait_tags([('X', n), ('W', f['t'], f['u'])])
        nq = 4 if f['i'] < 9 else 2
        for q in range(nq):
            a = ACC(f['i'], q); w = Wreg(f['u'], q)
            c = '0' if f['first'] else f'v[{a}:{a+3}]'
            if out[-1].strip().startswith('v_pk_mul') and OPT['pknop'] >= 0: E(f's_nop {OPT["pknop"]}')
            if not OPT['nomfma']:
                E(f'v_mfma_f32_16x16x32_bf16 v[{a}:{a+3}], v[{f["buf"]}:{f["buf"]+3}], v[{w}:{w+3}], {c}')
            for _ in range(4):
                if pending: E(pending.pop(0))
        if f['t'] == 8:
            if n >= 1 and stream[n-1]['t'] == 8 and stream[n-1]['last'] and stream[n-1]['i'] == 9:
                pass
            if n >= 1 and stream[n-1]['t'] == 8 and stream[n-1]['last'] and stream[n-1]['i'] < 9:
                i = stream[n-1]['i']
                pending.extend(epilogue_instrs(i, i & 1))
    while pending: E(pending.pop(0))
    E(f's_cmp_lt_u32 s{S_PART}, 2')
    E('s_cbranch_scc0 L_c_nosh')
    for s in epilogue_instrs(9, 1): E(s)
    L('L_c_nosh')
    E('s_nop 7')
    for s in epilogue_instrs(8, 0): E(s)
    if OPT['stamps']:
        stamp('c')
        E('s_waitcnt vmcnt(0)')
        stamp('c')
        dump_stamps(0)
    rep_tail(V_LN)
    E('s_endpgm')

def rep_tail(ln):
    if OPT['rep'] <= 1: return
    E('s_waitcnt vmcnt(0) lgkmcnt(0)')
    E('s_barrier')
    E('s_add_u32 s90, s90, 1')
    E(f's_lshl_b32 s91, s{S_WV}, 6')
    E(f'v_add_u32 v0, s91, v{ln}')
    E('s_setprio 0')
    E(f's_cmp_lt_u32 s90, {OPT["rep"]}')
    E('s_cbranch_scc1 L_start')

def dump_stamps(role):
    stamp_flush()
    E('s_memrealtime s[92:93]')
    E('s_waitcnt lgkmcnt(0)')
    E('s_sub_u32 s92, s92, s94')
    E(f'v_writelane_b32 v{VSTAMP}, s92, {15 if not OPT["cst"] else 31}')
    if role == 0 and OPT['gst']:
        E(f's_cmp_lg_u32 s{S_WV}, 0')
        E('s_cbranch_scc1 L_nogst')
        E('v_mov_b32 v1, 0')
        E(f'v_readlane_b32 s70, v{VSTAMP}, {OPT["gst"]}')
        E(f'v_readlane_b32 s71, v{VSTAMP}, 1')
        E('v_writelane_b32 v1, s70, 0')
        E('v_writelane_b32 v1, s94, 1')
        E('s_not_b32 s93, s94')
        E('v_writelane_b32 v1, s93, 2')
        E('s_add_u32 s93, s92, s94')
        E('v_writelane_b32 v1, s93, 3')
        E('v_writelane_b32 v1, s71, 4')
        E('s_not_b32 s93, s70')
        E('v_writelane_b32 v1, s93, 5')
        E('v_mbcnt_lo_u32_b32 v2, -1, 0')
        E('v_mbcnt_hi_u32_b32 v2, -1, v2')
        E('v_lshlrev_b32 v2, 2, v2')
        E('v_cmp_gt_u32 vcc, 24, v2')
        E('s_and_saveexec_b64 s[70:71], vcc')
        E(f'global_atomic_umax v2, v1, s[{S_DBG}:{S_DBG+1}] offset:{192}')
        E('s_waitcnt vmcnt(0)')
        E('s_mov_b64 exec, -1')
        L('L_nogst')
    E('s_cmp_lg_u32 s2, 0')
    E(f's_cbranch_scc1 L_nost{role}')
    E(f's_cmp_lg_u32 s{S_WV}, {4*role}')
    E(f's_cbranch_scc1 L_nost{role}')
    E('v_mbcnt_lo_u32_b32 v1, -1, 0')
    E('v_mbcnt_hi_u32_b32 v1, -1, v1')
    E('v_lshlrev_b32 v1, 2, v1')
    E(f'v_cmp_gt_u32 vcc, {64 if (role == 1 and OPT["gst"]) else 128}, v1')
    E('s_and_saveexec_b64 s[70:71], vcc')
    E(f'global_store_dword v1, v{VSTAMP}, s[{S_DBG}:{S_DBG+1}] offset:{128*role}')
    E('s_waitcnt vmcnt(0)')
    L(f'L_nost{role}')

V_Q = 0
V_QV, V_XV, V_LB, V_WA = 96, 97, 98, 99
P_LN = 100
V_QC = 101
V_PD, V_PW, V_PX = 104, 105, 106
S_DK, S_P64 = 24, 25
lblc = [0]
def producer():
    L('L_producer')
    stamp_idx[0] = 0
    E(f'v_mov_b32 v{P_LN}, v0')
    E(f's_sub_u32 s{S_T0}, s{S_WV}, 4')
    E(f's_and_b32 s{S_H}, s{S_T0}, 1')
    E(f's_lshr_b32 s{S_RS}, s{S_T0}, 1')
    E(f's_mul_i32 s{S_T1}, s{S_PART}, {OPT["rotp"]}')
    E(f's_mul_i32 s{S_T2}, s{S_STRIP}, {OPT["rots"]}')
    E(f's_add_u32 s{S_T1}, s{S_T1}, s{S_T2}')
    rm = OPT['rotm']
    E(f's_mul_i32 s{S_T2}, s{S_T1}, {-(-65536 // rm)}')
    E(f's_lshr_b32 s{S_T2}, s{S_T2}, 16')
    E(f's_mul_i32 s{S_T2}, s{S_T2}, {rm}')
    E(f's_sub_u32 s{S_T1}, s{S_T1}, s{S_T2}')
    if OPT['rotk'] != 1: E(f's_mul_i32 s{S_T1}, s{S_T1}, {OPT["rotk"]}')
    assert (rm - 1) * OPT['rotk'] <= 8
    E(f's_add_u32 s{S_XB}, s{S_RB0}, s{S_RS}')
    E(f's_mul_i32 s{S_XB}, s{S_XB}, {XRB}')
    E(f's_cmp_lt_u32 s{S_PART}, 2')
    E(f's_cselect_b32 s{S_NRB}, 1, 0')
    E(f's_cmp_eq_u32 s{S_RS}, 0')
    E(f's_cselect_b32 s{S_NRB}, s{S_NRB}, 0')
    E(f's_lshl_b32 s{S_T2}, s{S_T1}, 7')
    E(f's_add_u32 s{S_XK}, s{S_XB}, s{S_T2}')
    E(f's_mul_i32 s{S_WK}, s{S_T1}, {64*QROW}')
    E(f's_lshl_b32 s{S_T2}, s{S_T0}, 4')
    E(f's_mul_i32 s{S_T2}, s{S_T2}, {QROW}')
    E(f's_lshl_b32 s{S_T3}, s{S_STRIP}, 9')
    E(f's_add_u32 s{S_T2}, s{S_T2}, s{S_T3}')
    E(f'v_lshrrev_b32 v1, 5, v{P_LN}')
    E(f'v_mul_u32_u24 v2, {8*QROW}, v1')
    E(f'v_and_b32 v3, 31, v{P_LN}')
    E('v_lshl_add_u32 v2, v3, 4, v2')
    E(f'v_add_u32 v{V_QV}, s{S_T2}, v2')
    for jj in range(8):
        E(f's_mov_b32 s{S_JJ+jj}, {jj*QROW}')
    E(f'v_lshrrev_b32 v4, 3, v{P_LN}')
    E(f's_lshl_b32 s{S_T3}, s{S_H}, 3')
    E(f'v_add_u32 v4, s{S_T3}, v4')
    E('v_lshrrev_b32 v5, 1, v4')
    E(f'v_and_b32 v6, 7, v{P_LN}')
    E('v_xor_b32 v5, v5, v6')
    E('v_lshlrev_b32 v5, 4, v5')
    E(f'v_mul_u32_u24 v4, {K*2}, v4')
    E(f'v_add_u32 v{V_XV}, v4, v5')
    E(f's_lshl_b32 s{S_XL}, s{S_H}, 10')
    E(f's_lshl_b32 s{S_T3}, s{S_RS}, 11')
    E(f's_add_u32 s{S_XL}, s{S_XL}, s{S_T3}')
    E(f's_lshl_b32 s{S_XL2}, s{S_H}, 10')
    E(f's_add_u32 s{S_XL2}, s{S_XL2}, {XSH}')
    E(f'v_add_u32 v{V_QC}, s{S_WK}, v{V_QV}')
    E('s_waitcnt lgkmcnt(0)')
    if OPT['pst']: stamp('p', True)
    srd(S_Q, 6, K * N * 4)

    vm = []
    def opsW(t):
        b = V_Q + 32 * (t % 3)
        g = []
        if OPT['now'] and t > 1: return g
        for jj in range(8):
            pre = []
            if jj == 0 and t > 0: pre = [f'v_add_u32 v{V_QC}, s{S_WK+t}, v{V_QV}']
            g.append((pre + [f'buffer_load_dwordx4 v[{b+4*jj}:{b+4*jj+3}], v{V_QC}, s[{S_Q}:{S_Q+3}], s{S_JJ+jj} offen {OPT["qnt"]}'.rstrip()], ('W', t), False))
        return g
    def opsX(t):
        g = []
        if OPT['nox'] and t > 0: return g
        for z in range(9):
            ins = [f's_add_u32 m0, s{S_XL}, {(t % 3) * XSTG + z * 4096}',
                   f's_add_u32 s{S_SOFF}, s{S_XK+t}, {2 * z * XRB}',
                   f'buffer_load_dwordx4 v{V_XV}, s[{S_X}:{S_X+3}], s{S_SOFF} offen lds']
            g.append((ins, ('X', t), False))
        return g
    def opsS(t):
        if OPT['nox'] and t > 0: return []
        lblc[0] += 1
        ins = [f's_cmp_eq_u32 s{S_NRB}, 1', f's_cbranch_scc0 L_sk{lblc[0]}',
               f's_add_u32 m0, s{S_XL2}, {(t & 1) * 2048}',
               f's_add_u32 s{S_SOFF}, s{S_XK+t}, {18 * XRB}',
               f'buffer_load_dwordx4 v{V_XV}, s[{S_X}:{S_X+3}], s{S_SOFF} offen lds',
               f'@L_sk{lblc[0]}']
        return [(ins, ('S', t), True)]
    def opsP(k):
        if not OPT['duty']: return []
        lblc[0] += 1
        ins = [f's_cmp_eq_u32 s{S_DK}, {k}', f's_cbranch_scc0 L_sk{lblc[0]}',
               f'buffer_load_dword v{V_PD}, v{V_PW}, s[{S_Q}:{S_Q+3}], 0 offen {OPT["pfo"]}'.rstrip(),
               f'buffer_load_dword v{V_PD}, v{V_PX}, s[{S_X}:{S_X+3}], 0 offen {OPT["pfo"]}'.rstrip(),
               f'buffer_load_dword v{V_PD}, v{V_PW}, s[{S_Q}:{S_Q+3}], s{S_JJ+2} offen {OPT["pfo"]}'.rstrip(),
               f'buffer_load_dword v{V_PD}, v{V_PX}, s[{S_X}:{S_X+3}], s{S_P64} offen {OPT["pfo"]}'.rstrip(),
               f'@L_sk{lblc[0]}']
        return [(ins, ('P', k), True)]
    def ops(tok):
        return {'W': opsW, 'X': opsX, 'S': opsS, 'P': opsP}[tok[0]](int(tok[1:]))
    def emit_group(g):
        for s_ in g[0]:
            if s_.startswith('@'): L(s_[1:])
            else: E(s_)
        vm.append((g[1], g[2]))
    def vwait(*tags):
        idx = None
        for k, (tg, opt) in enumerate(vm):
            if tg in tags: idx = k
        if idx is None: return
        rest = vm[idx + 1:]
        n = sum(1 for (tg, opt) in rest if not opt)
        E(f's_waitcnt vmcnt({n})')
        del vm[:idx + 1]
    def landed(tag): return all(tg != tag for tg, _ in vm)
    def deq_instrs(t):
        b = V_Q + 32 * (t % 3)
        ins = []
        if OPT['nodeq'] and t > 0: return ins
        for half in range(2):
            es = (2 * half, 2 * half + 1)
            for e in es:
                for d in range(4):
                    lo = b + 4 * (2 * d) + e
                    ins.append(f'v_lshl_add_u32 v{lo}, v{lo}, 6, v{V_LB}')
            for e in es:
                for d in range(4):
                    lo = b + 4 * (2 * d) + e; hi = b + 4 * (2 * d + 1) + e
                    ins.append(f'v_lshl_add_u32 v{lo}, v{hi}, 10, v{lo}')
        rd = []
        for e in range(4):
            for d in range(4):
                lo = b + 4 * (2 * d) + e
                rd.append(f'ds_read_b32 v{b + 4*(2*e+1) + d}, v{lo}')
        if not OPT['nolut']: ins += rd
        if OPT['nowr']: return ins + ['s_waitcnt lgkmcnt(0)']
        for e in range(4):
            r = b + 4 * (2 * e + 1)
            ins.append(f's_waitcnt lgkmcnt({(3 - e) * 4 + e})')
            ins.append(f'ds_write_b128 v{V_WA}, v[{r}:{r+3}] offset:{(t & 1) * 16384 + e * 1024}')
        return ins
    def interleave(groups, ins, per=None):
        n = len(groups)
        if n == 0:
            for s_ in ins: E(s_)
            return
        if per is None: per = OPT['per'] if OPT['per'] else -(-len(ins) // n)
        k = 0
        for g in groups:
            emit_group(g)
            for s_ in ins[k:k+per]: E(s_)
            k += per
        for s_ in ins[k:]: E(s_)

    for g in opsW(0): emit_group(g)
    srd(S_X, 4, M * K * 2)
    for g in opsX(0) + opsS(0): emit_group(g)
    if OPT['pst']: stamp('p', True)
    for t in range(1, 9):
        E(f's_add_u32 s{S_T1}, s{S_T1}, 1')
        E(f's_cmp_eq_u32 s{S_T1}, 9')
        E(f's_cselect_b32 s{S_T1}, 0, s{S_T1}')
        E(f's_lshl_b32 s{S_T2}, s{S_T1}, 7')
        E(f's_add_u32 s{S_XK+t}, s{S_XB}, s{S_T2}')
        E(f's_mul_i32 s{S_WK+t}, s{S_T1}, {64*QROW}')
    E(f'v_and_b32 v{V_LB}, 31, v{P_LN}')
    T0, T1 = 102, 103
    E(f'v_lshrrev_b32 v{T0}, 4, v{V_LB}')
    E(f'v_and_b32 v{T1}, 15, v{V_LB}')
    E(f'v_lshlrev_b32 v{T1}, 4, v{T1}')
    E(f'v_lshl_add_u32 v{T1}, v{T0}, 12, v{T1}')
    E(f'v_lshrrev_b32 v{T0}, 5, v{P_LN}')
    E(f'v_lshl_add_u32 v{T1}, v{T0}, 8, v{T1}')
    E(f's_lshl_b32 s{S_T3}, s{S_H}, 9')
    E(f's_lshl_b32 s{S_T2}, s{S_RS}, 13')
    E(f's_add_u32 s{S_T3}, s{S_T3}, s{S_T2}')
    E(f's_add_u32 s{S_T3}, s{S_T3}, {WST}')
    E(f'v_add_u32 v{V_WA}, s{S_T3}, v{T1}')
    E(f'v_and_b32 v{V_LB}, 15, v{V_LB}')
    E(f'v_lshlrev_b32 v{V_LB}, 2, v{V_LB}')
    E(f'v_add_u32 v{V_LB}, {LUT}, v{V_LB}')
    if OPT['duty']:
        E('s_lshr_b32 s26, s2, 3')
        E(f's_and_b32 s{S_DK}, s26, 7')
        E(f's_add_u32 s{S_DK}, s{S_DK}, 1')
        E('s_lshr_b32 s26, s26, 3')
        E(f's_sub_u32 s27, s{S_WV}, 4')
        E('s_lshl_b32 s28, s26, 9')
        E('s_lshl_b32 s29, s27, 7')
        E('s_add_u32 s28, s28, s29')
        E(f'v_add_u32 v{V_PX}, s28, v{P_LN}')
        E(f'v_mul_u32_u24 v{V_PX}, {K*2}, v{V_PX}')
        E(f's_lshl_b32 s28, s{S_DK}, 7')
        E(f'v_add_u32 v{V_PX}, s28, v{V_PX}')
        E(f's_mov_b32 s{S_P64}, {64*K*2}')
        E('s_and_b32 s28, s2, 7')
        E('s_lshl_b32 s28, s28, 5')
        E('s_mul_i32 s29, s28, 293')
        E('s_lshr_b32 s29, s29, 11')
        E('s_add_u32 s28, s28, 31')
        E('s_mul_i32 s28, s28, 293')
        E('s_lshr_b32 s28, s28, 11')
        E('s_min_u32 s28, s28, 35')
        E('s_sub_u32 s28, s28, s29')
        E('s_lshl_b32 s28, s28, 2')
        E('s_add_u32 s28, s28, 3')
        E(f'v_and_b32 v{V_PW}, 31, v{P_LN}')
        E(f'v_min_u32 v{V_PW}, s28, v{V_PW}')
        E(f'v_lshlrev_b32 v{V_PW}, 7, v{V_PW}')
        E('s_lshl_b32 s29, s29, 9')
        E(f's_lshl_b32 s28, s{S_DK}, 6')
        E('s_lshl_b32 s26, s26, 4')
        E('s_add_u32 s28, s28, s26')
        E('s_lshl_b32 s27, s27, 2')
        E('s_add_u32 s28, s28, s27')
        E(f's_mul_i32 s28, s28, {QROW}')
        E('s_add_u32 s28, s28, s29')
        E(f'v_lshrrev_b32 v{V_PD}, 5, v{P_LN}')
        E(f'v_mul_u32_u24 v{V_PD}, {QROW}, v{V_PD}')
        E(f'v_add3_u32 v{V_PW}, v{V_PW}, v{V_PD}, s28')
        for tok in OPT['pre1'].replace('_', ' ').split():
            for g in ops(tok): emit_group(g)
    if OPT['pprio']: E(f's_setprio {OPT["pprio"]}')
    stamp('p')
    E('s_barrier')
    vwait(('W', 0))
    stamp('p')
    g1 = opsW(1)
    for tok in OPT['pre2'].replace('_', ' ').split(): g1 += ops(tok)
    interleave(g1, deq_instrs(0), per=7)
    vwait(('X', 0), ('S', 0))
    E('s_waitcnt lgkmcnt(0)')
    stamp('p')
    E('s_barrier')
    stamp('p')
    sched = [r.split() for r in OPT['sched'].replace('_', ' ').split(';')]
    for r in range(0, 8):
        toks = sched[r]
        k = toks.index('D')
        for tok in toks[:k]:
            for g in ops(tok): emit_group(g)
        vwait(('W', r + 1))
        gs = []
        for tok in toks[k+1:]: gs += ops(tok)
        interleave(gs, deq_instrs(r + 1), per=(OPT['per'] or max(4, -(-56 // max(1, len(gs))))))
        if OPT['cst']: stamp('p')
        vwait(('X', r + 1), ('S', r + 1))
        E('s_waitcnt lgkmcnt(0)')
        if OPT['cst']: stamp('p')
        E('s_barrier')
        if OPT['cst'] or r in (0, 1, 2, 7): stamp('p')
    if OPT['stamps']:
        stamp('p')
        dump_stamps(1)
    rep_tail(P_LN)
    E('s_endpgm')

header()
prologue()
consumer()
producer()
L('L_end')
E('s_endpgm')
footer()
print('\n'.join(out))
```

```python
import sys
OPT = dict(tlb=0, stamps=0, prio=1, sc='', rotp=4, rots=1, cst=0, pst=0, rep=1, look=3, nxf=5, noepi=0, nomfma=0,
           sched='S1 X1 D W2 X2;S2 D W3 X3 W4;D S3 X4 W5;D S4 X5 W6;D S5 X6 W7;D S6 X7 W8;D S7 X8;D S8', ord='xw', qnt='', per=0, pprio=0, hard=0, pknop=1, noread=0, nodeq=0, nox=0, now=0, nolut=0, nowr=0, gst=0, rotm=9, rotk=1, duty=0, pre1='', pre2='', pf=0, pfw=37, pfx=61, pfo='')
for a in sys.argv[1:]:
    k, v = a.split('=')
    OPT[k] = int(v) if v.lstrip('-').isdigit() and k not in ('sched', 'pre1', 'pre2') else v
NAME = 'standalone__normalfloat_lut_codebook_lookup__prompt_kernel'
out = []
def E(s): out.append('    ' + s)
def L(s): out.append(s + ':')

K, N, M = 576, 4608, 2048
QROW = N * 4
XRB = 16 * K * 2
ORB = 16 * N * 2
XSTG = 18 * 2048
XST = 0
XSH = 3 * XSTG
WST = XSH + 4096
LUT = WST + 32768
LDS_TOTAL = LUT + 16384

S_X, S_Q, S_O, S_CB, S_AM = 16, 20, 24, 28, 32
S_STRIP, S_PART, S_RB0, S_NRB, S_WV = 36, 37, 38, 39, 40
S_OB = 41
S_T0, S_T1, S_T2, S_T3 = 42, 43, 54, 55
S_JJ = 44
S_XB, S_XL, S_H, S_RS = 52, 53, 56, 57
S_SW = 58
S_DBG = 60
S_ST = 62
S_ST0 = 64
S_SOFF = 66
S_OB2 = 67
S_XL2 = 41
S_XK = 72
S_WK = 81
VSTAMP = 255

stamp_idx = [0]
def stamp(role, sync=False):
    if not OPT['stamps']: return
    i = stamp_idx[0]; stamp_idx[0] += 1
    if i > 0:
        E(f's_sub_u32 s{S_ST}, s{S_ST}, s{S_ST0}')
        E(f'v_writelane_b32 v{VSTAMP}, s{S_ST}, {i-1}')
    E(f's_memtime s[{S_ST}:{S_ST+1}]')
    if sync or role == 'p': E('s_waitcnt lgkmcnt(0)')
def stamp_flush():
    i = stamp_idx[0]
    E('s_waitcnt lgkmcnt(0)')
    E(f's_sub_u32 s{S_ST}, s{S_ST}, s{S_ST0}')
    E(f'v_writelane_b32 v{VSTAMP}, s{S_ST}, {i-1}')

def header():
    out.append('; Kernarg: 0 x(1,2048,576) bf16 | 8 qw(576,4608) i32 | 16 codebook(16) bf16 | 24 absmax(1,4608) bf16 | 32 out | 40 debug | 48 ws')
    out.append(f'; @launch grid=(256,1,1) block=(512,1,1) lds={LDS_TOTAL}')
    out.append('.amdgcn_target "amdgcn-amd-amdhsa--gfx950"')
    out.append('.text')
    out.append(f'.globl {NAME}')
    out.append('.p2align 8')
    out.append(f'.type {NAME},@function')
    L(NAME)

def footer():
    out.append('.section .rodata,"a"')
    out.append('.p2align 6')
    out.append(f'.amdhsa_kernel {NAME}')
    for s in ['next_free_vgpr 256', 'next_free_sgpr 96', 'accum_offset 256', 'group_segment_fixed_size 0',
              'kernarg_size 56', 'user_sgpr_count 2', 'user_sgpr_kernarg_segment_ptr 1',
              'system_sgpr_workgroup_id_x 1']:
        out.append('  .amdhsa_' + s)
    out.append('.end_amdhsa_kernel')

def srd(d, p, nbytes):
    E(f's_mov_b32 s{d}, s{p}')
    E(f's_and_b32 s{d+1}, s{p+1}, 0xffff')
    E(f's_mov_b32 s{d+2}, {nbytes}')
    E(f's_mov_b32 s{d+3}, 0x20000')

def prologue():
    E('s_cmp_ge_u32 s2, 256')
    E('s_cbranch_scc1 L_end')
    if OPT['rep'] > 1:
        E('s_mov_b32 s90, 0')
        L('L_start')
    E('s_load_dwordx4 s[4:7], s[0:1], 0')
    E('s_load_dwordx4 s[8:11], s[0:1], 16')
    E('s_load_dwordx2 s[12:13], s[0:1], 32')
    if OPT['stamps']:
        E(f's_load_dwordx2 s[{S_DBG}:{S_DBG+1}], s[0:1], 40')
        E(f's_memtime s[{S_ST0}:{S_ST0+1}]')
        E('s_memrealtime s[94:95]')
    E(f's_and_b32 s{S_T0}, s2, 7')
    E(f's_lshl_b32 s{S_T0}, s{S_T0}, 5')
    E(f's_lshr_b32 s{S_T1}, s2, 3')
    E(f's_add_u32 s{S_T0}, s{S_T0}, s{S_T1}')
    E(f's_cmp_ge_u32 s{S_T0}, 252')
    E('s_cbranch_scc1 L_end')
    E(f's_mul_i32 s{S_STRIP}, s{S_T0}, 293')
    E(f's_lshr_b32 s{S_STRIP}, s{S_STRIP}, 11')
    E(f's_mul_i32 s{S_T1}, s{S_STRIP}, 7')
    E(f's_sub_u32 s{S_PART}, s{S_T0}, s{S_T1}')
    E(f's_mul_i32 s{S_RB0}, s{S_PART}, 18')
    E(f's_min_u32 s{S_T1}, s{S_PART}, 2')
    E(f's_add_u32 s{S_RB0}, s{S_RB0}, s{S_T1}')
    E('v_lshrrev_b32 v1, 6, v0')
    E('v_and_b32 v0, 63, v0')
    E(f'v_readfirstlane_b32 s{S_WV}, v1')
    if OPT['stamps']:
        E(f'v_mov_b32 v{VSTAMP}, 0')
    E('s_nop 3')
    E(f's_cmp_ge_u32 s{S_WV}, 4')
    E('s_cbranch_scc1 L_producer')

V_ACC = 0
V_W = 152
V_XF = 184
NXF = OPT['nxf']; LOOK = OPT['look']
V_SC = V_XF + 4 * NXF
V_TMP = V_SC + 6
V_XA0, V_XA1, V_XB0, V_XB1, V_WA01, V_WA23 = [V_TMP + 16 + i for i in range(6)]
V_OV = V_TMP + 22
V_LN = V_TMP + 26
V_XC0, V_XC1 = V_TMP + 27, V_TMP + 28
assert V_XC1 < 255 and V_TMP % 2 == 0 and V_SC % 2 == 0

def ACC(i, q): return (16 * i + 4 * q) if i < 9 else 144 + 4 * q
def Wreg(u, q): return V_W + 16 * u + 4 * q

def epilogue_instrs(i, sel):
    t = V_TMP + 8 * sel
    ins = []
    if OPT['noepi']: return ins
    nq = 4 if i < 9 else 2
    for q in range(nq):
        for r in (0, 2):
            a = ACC(i, q) + r
            sp = V_SC + (q & ~1)
            sel = 'op_sel_hi:[1,0]' if (q & 1) == 0 else 'op_sel:[0,1] op_sel_hi:[1,1]'
            ins.append(f'v_pk_mul_f32 v[{a}:{a+1}], v[{a}:{a+1}], v[{sp}:{sp+1}] {sel}')
    if i < 9:
        for r in range(4):
            ins.append(f'v_cvt_pk_bf16_f32 v{t+2*r}, v{ACC(i,0)+r}, v{ACC(i,1)+r}')
            ins.append(f'v_cvt_pk_bf16_f32 v{t+2*r+1}, v{ACC(i,2)+r}, v{ACC(i,3)+r}')
        grp = [f's_mov_b64 exec, s[{S_SW}:{S_SW+1}]']
        for r in range(4):
            grp.append(f'v_swap_b32 v{t+2*r}, v{t+2*r+1}')
        grp.append('s_mov_b64 exec, -1')
        ins.append('\n    '.join(grp))
        ins.append(f's_add_u32 s{S_SOFF}, s{S_OB}, {i * ORB}')
        for r in range(4):
            ins.append(f'buffer_store_dwordx2 v[{t+2*r}:{t+2*r+1}], v{V_OV+r}, s[{S_O}:{S_O+3}], s{S_SOFF} offen {OPT["sc"]}'.rstrip())
    else:
        for r in range(4):
            ins.append(f'v_cvt_pk_bf16_f32 v{t+r}, v{ACC(i,0)+r}, v{ACC(i,1)+r}')
        for r in range(4):
            ins.append(f'buffer_store_dword v{t+r}, v{V_OV+r}, s[{S_O}:{S_O+3}], s{S_OB2} offen {OPT["sc"]}'.rstrip())
    return ins

CBVALS = [0xbf80, 0xbf32, 0xbf06, 0xbeca, 0xbe92, 0xbe3d, 0xbdba, 0x0000,
          0x3da3, 0x3e25, 0x3e7c, 0x3ead, 0x3ee2, 0x3f10, 0x3f39, 0x3f80]

def consumer():
    L('L_consumer')
    E(f'v_mov_b32 v{V_LN}, v0')
    E(f's_and_b32 s{S_H}, s{S_WV}, 1')
    E(f's_lshr_b32 s{S_RS}, s{S_WV}, 1')
    E(f's_cmp_eq_u32 s{S_RS}, 1')
    E(f's_cselect_b64 s[{S_SW}:{S_SW+1}], -1, 0')
    E(f'v_and_b32 v5, 15, v{V_LN}')
    E(f'v_lshrrev_b32 v7, 4, v{V_LN}')
    E('v_lshrrev_b32 v6, 1, v5')
    E('v_xor_b32 v6, v6, v7')
    E('v_lshlrev_b32 v6, 4, v6')
    E(f'v_lshl_add_u32 v6, v5, 7, v6')
    E(f'v_add_u32 v{V_XB0}, {XSH}, v6')
    E(f'v_xor_b32 v{V_XB1}, 64, v{V_XB0}')
    E(f's_mul_i32 s{S_T1}, s{S_RS}, {9*2048}')
    E(f'v_add_u32 v{V_XA0}, s{S_T1}, v6')
    E(f'v_xor_b32 v{V_XA1}, 64, v{V_XA0}')
    E(f's_lshl_b32 s{S_T1}, s{S_H}, 12')
    E(f's_add_u32 s{S_T1}, s{S_T1}, {WST}')
    E(f's_lshl_b32 s{S_T2}, s{S_RS}, 11')
    E(f's_add_u32 s{S_T3}, s{S_T1}, s{S_T2}')
    E(f'v_lshlrev_b32 v6, 4, v{V_LN}')
    E(f'v_add_u32 v{V_WA01}, s{S_T3}, v6')
    E(f'v_xor_b32 v{V_WA23}, 2048, v{V_WA01}') if (WST % 4096 == 0) else None
    if WST % 4096 != 0:
        E(f's_xor_b32 s{S_T2}, s{S_T2}, 2048')
        E(f's_add_u32 s{S_T3}, s{S_T1}, s{S_T2}')
        E(f'v_add_u32 v{V_WA23}, s{S_T3}, v6')
    E(f'v_mul_u32_u24 v{V_OV}, {4*N*2}, v7')
    E(f'v_lshl_add_u32 v{V_OV}, v5, 3, v{V_OV}')
    for r in range(1, 4): E(f'v_add_u32 v{V_OV+r}, {r*N*2}, v{V_OV}')
    E(f's_lshl_b32 s{S_T1}, s{S_WV}, 12')
    E(f's_add_u32 s{S_T1}, s{S_T1}, {LUT}')
    E(f'v_lshlrev_b32 v6, 4, v{V_LN}')
    E(f'v_add_u32 v6, s{S_T1}, v6')
    E(f'v_lshrrev_b32 v1, 2, v{V_LN}')
    E('v_lshlrev_b32 v1, 1, v1')
    E('v_lshlrev_b32 v4, 3, v5')
    E('s_waitcnt lgkmcnt(0)')
    if OPT['pst']: stamp('c', True)
    srd(S_CB, 8, 32)
    E(f'buffer_load_ushort v2, v1, s[{S_CB}:{S_CB+3}], 0 offen')
    E(f's_lshl_b32 s{S_T0}, s{S_WV}, 3')
    E(f's_add_u32 s8, s8, s{S_T0}')
    E(f's_addc_u32 s9, s9, 0')
    E(f's_load_dwordx2 s[{S_T2}:{S_T3}], s[8:9], 0')
    srd(S_AM, 10, N * 2)
    srd(S_O, 12, M * N * 2)
    E(f's_lshl_b32 s{S_T0}, s{S_STRIP}, 8')
    E(f's_lshl_b32 s{S_T1}, s{S_H}, 7')
    E(f's_add_u32 s{S_T0}, s{S_T0}, s{S_T1}')
    E(f'buffer_load_dwordx2 v[8:9], v4, s[{S_AM}:{S_AM+3}], s{S_T0} offen')
    E(f's_mul_i32 s{S_OB}, s{S_RS}, 9')
    E(f's_add_u32 s{S_OB}, s{S_OB}, s{S_RB0}')
    E(f's_mul_i32 s{S_OB}, s{S_OB}, {ORB}')
    E(f's_add_u32 s{S_OB}, s{S_OB}, s{S_T0}')
    E(f's_add_u32 s{S_OB2}, s{S_RB0}, 18')
    E(f's_mul_i32 s{S_OB2}, s{S_OB2}, {ORB}')
    E(f's_add_u32 s{S_OB2}, s{S_OB2}, s{S_T0}')
    E(f's_lshl_b32 s{S_T1}, s{S_RS}, 2')
    E(f's_add_u32 s{S_OB2}, s{S_OB2}, s{S_T1}')
    NPF = 0
    if OPT['tlb']:
        E(f'buffer_load_dword v250, v{V_OV}, s[{S_O}:{S_O+3}], s{S_OB} offen')
        E(f's_add_u32 s{S_T1}, s{S_OB}, {8 * ORB}')
        E(f'buffer_load_dword v251, v{V_OV}, s[{S_O}:{S_O+3}], s{S_T1} offen')
        NPF += 2
    if OPT['pf']:
        PFD = 250
        srd(S_X, 4, M * K * 2)
        srd(S_Q, 6, K * N * 4)
        E(f's_mul_i32 s{S_T1}, s{S_PART}, {OPT["pfw"]}')
        E(f'v_add_u32 v10, s{S_T1}, v{V_LN}')
        E('v_min_u32 v10, 255, v10')
        E('v_lshrrev_b32 v11, 2, v10')
        E('v_and_b32 v10, 3, v10')
        E(f'v_mul_u32_u24 v11, {QROW}, v11')
        E('v_lshl_add_u32 v10, v10, 7, v11')
        E(f's_lshl_b32 s{S_T1}, s{S_STRIP}, 9')
        E(f'v_add_u32 v10, s{S_T1}, v10')
        E(f's_mul_i32 s{S_T1}, s{S_STRIP}, 205')
        E(f's_lshr_b32 s{S_T1}, s{S_T1}, 10')
        E(f's_mul_i32 s{S_T1}, s{S_T1}, 5')
        E(f's_sub_u32 s{S_T1}, s{S_STRIP}, s{S_T1}')
        E(f's_mul_i32 s{S_T1}, s{S_T1}, {OPT["pfx"]}')
        E(f'v_add_u32 v11, s{S_T1}, v{V_LN}')
        E(f's_cmp_lt_u32 s{S_PART}, 2')
        E(f's_cselect_b32 s{S_T1}, 16, 0')
        E(f's_add_u32 s{S_T1}, s{S_T1}, 287')
        E(f'v_min_u32 v11, s{S_T1}, v11')
        E(f's_lshl_b32 s{S_T1}, s{S_RB0}, 4')
        E(f'v_add_u32 v11, s{S_T1}, v11')
        E(f'v_mul_u32_u24 v11, {K*2}, v11')
        E(f's_add_u32 s{S_T1}, s{S_WV}, 1')
        for k in range(2):
            E(f's_mul_i32 s68, s{S_T1}, {64*QROW}')
            E(f's_lshl_b32 s69, s{S_T1}, 7')
            E(f's_mov_b32 exec_hi, {hex((1 << (OPT["pfw"] - 32)) - 1)}')
            E(f'buffer_load_dword v{PFD}, v10, s[{S_Q}:{S_Q+3}], s68 offen {OPT["pfo"]}'.rstrip())
            E(f's_mov_b32 exec_hi, {hex((1 << (OPT["pfx"] - 32)) - 1)}')
            E(f'buffer_load_dword v{PFD}, v11, s[{S_X}:{S_X+3}], s69 offen {OPT["pfo"]}'.rstrip())
            E('s_mov_b64 exec, -1')
            E(f's_add_u32 s{S_T1}, s{S_T1}, 4')
            NPF += 2
    E(f's_waitcnt vmcnt({1 + NPF}) lgkmcnt(0)')
    if OPT['pst']: stamp('c', True)
    E(f's_lshl_b32 s68, s{S_T2}, 16')
    E(f's_and_b32 s69, s{S_T2}, 0xffff0000')
    E(f's_lshl_b32 s70, s{S_T3}, 16')
    E(f's_and_b32 s71, s{S_T3}, 0xffff0000')
    for i in range(4):
        base = 16 + 4 * i
        for c in range(4):
            E(f'v_or_b32 v{base+c}, s{68 + i}, v2')
        E(f'ds_write_b128 v6, v[{base}:{base+3}] offset:{i*1024}')
    E(f's_waitcnt vmcnt({NPF})')
    E(f's_mov_b64 exec, s[{S_SW}:{S_SW+1}]')
    E('v_swap_b32 v8, v9')
    E('s_mov_b64 exec, -1')
    E(f'v_lshlrev_b32 v{V_SC}, 16, v8')
    E(f'v_and_b32 v{V_SC+1}, 0xffff0000, v8')
    E(f'v_lshlrev_b32 v{V_SC+2}, 16, v9')
    E(f'v_and_b32 v{V_SC+3}, 0xffff0000, v9')
    E('s_waitcnt lgkmcnt(0)')
    if OPT['pst']: stamp('c', True)
    E('s_barrier')
    if OPT['prio']: E(f's_setprio {OPT["prio"]}')
    stamp('c')

    stream = []
    for t in range(9):
        if t < 8:
            order = [(i, u) for u in range(2) for i in range(10)]
        else:
            order = [(9, 0), (0, 0), (9, 1), (0, 1)] + [(i, u) for i in range(1, 9) for u in range(2)]
        for k, (i, u) in enumerate(order):
            stream.append(dict(t=t, i=i, u=u, first=(t == 0 and u == 0), newround=(k == 0), k=k,
                               last=(t == 8 and u == 1)))
    n_all = len(stream)
    for n, f in enumerate(stream): f['buf'] = V_XF + 4 * (n % NXF)
    lg = []
    def readW(t, u):
        for q in range(4):
            a = V_WA01 if q < 2 else V_WA23
            r = Wreg(u, q)
            E(f'ds_read_b128 v[{r}:{r+3}], v{a} offset:{(t & 1) * 16384 + u * 8192 + (q & 1) * 1024}')
            lg.append(('W', t, u))
    def issue_read(n):
        f = stream[n]
        if f['newround']:
            if f['t'] > 0:
                if OPT['cst'] == 2: stamp('c')
                E('s_waitcnt lgkmcnt(0)'); lg.clear()
            E('s_barrier')
            if OPT['cst'] or f['t'] in (0, 1, 2, 3, 8): stamp('c')
            readW(f['t'], 0)
            if f['t'] == 0: readW(0, 1)
        if f['newround']:
            E(f'v_add_u32 v{V_XC0}, {(f["t"] % 3) * XSTG}, v{V_XA0}')
            E(f'v_add_u32 v{V_XC1}, {(f["t"] % 3) * XSTG}, v{V_XA1}')
        if f['i'] < 9:
            a = V_XC0 if f['u'] == 0 else V_XC1
            off = f['i'] * 2048
        else:
            a = V_XB0 if f['u'] == 0 else V_XB1
            off = (f['t'] & 1) * 2048
        if OPT['noread']: return
        E(f'ds_read_b128 v[{f["buf"]}:{f["buf"]+3}], v{a} offset:{off}')
        lg.append(('X', n))
    def wait_tags(tags):
        idx = None
        for k, tag in enumerate(lg):
            if tag in tags: idx = k
        if idx is None: return
        remain = len(lg) - idx - 1
        E(f's_waitcnt lgkmcnt({min(remain, 15)})')
        del lg[:idx + 1]

    pending = []
    for n in range(LOOK): issue_read(n)
    done_ep = []
    for n in range(n_all):
        f = stream[n]
        if n + LOOK < n_all: issue_read(n + LOOK)
        if f['newround'] and f['t'] > 0:
            readW(f['t'], 1)
        wait_tags([('X', n), ('W', f['t'], f['u'])])
        nq = 4 if f['i'] < 9 else 2
        for q in range(nq):
            a = ACC(f['i'], q); w = Wreg(f['u'], q)
            c = '0' if f['first'] else f'v[{a}:{a+3}]'
            if out[-1].strip().startswith('v_pk_mul') and OPT['pknop'] >= 0: E(f's_nop {OPT["pknop"]}')
            if not OPT['nomfma']:
                E(f'v_mfma_f32_16x16x32_bf16 v[{a}:{a+3}], v[{f["buf"]}:{f["buf"]+3}], v[{w}:{w+3}], {c}')
            for _ in range(4):
                if pending: E(pending.pop(0))
        if f['t'] == 8:
            if n >= 1 and stream[n-1]['t'] == 8 and stream[n-1]['last'] and stream[n-1]['i'] == 9:
                pass
            if n >= 1 and stream[n-1]['t'] == 8 and stream[n-1]['last'] and stream[n-1]['i'] < 9:
                i = stream[n-1]['i']
                pending.extend(epilogue_instrs(i, i & 1))
    while pending: E(pending.pop(0))
    E(f's_cmp_lt_u32 s{S_PART}, 2')
    E('s_cbranch_scc0 L_c_nosh')
    for s in epilogue_instrs(9, 1): E(s)
    L('L_c_nosh')
    E('s_nop 7')
    for s in epilogue_instrs(8, 0): E(s)
    if OPT['stamps']:
        stamp('c')
        E('s_waitcnt vmcnt(0)')
        stamp('c')
        dump_stamps(0)
    rep_tail(V_LN)
    E('s_endpgm')

def rep_tail(ln):
    if OPT['rep'] <= 1: return
    E('s_waitcnt vmcnt(0) lgkmcnt(0)')
    E('s_barrier')
    E('s_add_u32 s90, s90, 1')
    E(f's_lshl_b32 s91, s{S_WV}, 6')
    E(f'v_add_u32 v0, s91, v{ln}')
    E('s_setprio 0')
    E(f's_cmp_lt_u32 s90, {OPT["rep"]}')
    E('s_cbranch_scc1 L_start')

def dump_stamps(role):
    stamp_flush()
    E('s_memrealtime s[92:93]')
    E('s_waitcnt lgkmcnt(0)')
    E('s_sub_u32 s92, s92, s94')
    E(f'v_writelane_b32 v{VSTAMP}, s92, {15 if not OPT["cst"] else 31}')
    if role == 0 and OPT['gst']:
        E(f's_cmp_lg_u32 s{S_WV}, 0')
        E('s_cbranch_scc1 L_nogst')
        E('v_mov_b32 v1, 0')
        E(f'v_readlane_b32 s70, v{VSTAMP}, {OPT["gst"]}')
        E(f'v_readlane_b32 s71, v{VSTAMP}, 1')
        E('v_writelane_b32 v1, s70, 0')
        E('v_writelane_b32 v1, s94, 1')
        E('s_not_b32 s93, s94')
        E('v_writelane_b32 v1, s93, 2')
        E('s_add_u32 s93, s92, s94')
        E('v_writelane_b32 v1, s93, 3')
        E('v_writelane_b32 v1, s71, 4')
        E('s_not_b32 s93, s70')
        E('v_writelane_b32 v1, s93, 5')
        E('v_mbcnt_lo_u32_b32 v2, -1, 0')
        E('v_mbcnt_hi_u32_b32 v2, -1, v2')
        E('v_lshlrev_b32 v2, 2, v2')
        E('v_cmp_gt_u32 vcc, 24, v2')
        E('s_and_saveexec_b64 s[70:71], vcc')
        E(f'global_atomic_umax v2, v1, s[{S_DBG}:{S_DBG+1}] offset:{192}')
        E('s_waitcnt vmcnt(0)')
        E('s_mov_b64 exec, -1')
        L('L_nogst')
    E('s_cmp_lg_u32 s2, 0')
    E(f's_cbranch_scc1 L_nost{role}')
    E(f's_cmp_lg_u32 s{S_WV}, {4*role}')
    E(f's_cbranch_scc1 L_nost{role}')
    E('v_mbcnt_lo_u32_b32 v1, -1, 0')
    E('v_mbcnt_hi_u32_b32 v1, -1, v1')
    E('v_lshlrev_b32 v1, 2, v1')
    E(f'v_cmp_gt_u32 vcc, {64 if (role == 1 and OPT["gst"]) else 128}, v1')
    E('s_and_saveexec_b64 s[70:71], vcc')
    E(f'global_store_dword v1, v{VSTAMP}, s[{S_DBG}:{S_DBG+1}] offset:{128*role}')
    E('s_waitcnt vmcnt(0)')
    L(f'L_nost{role}')

V_Q = 0
V_QV, V_XV, V_LB, V_WA = 96, 97, 98, 99
P_LN = 100
V_QC = 101
V_PD, V_PW, V_PX = 104, 105, 106
S_DK, S_P64 = 24, 25
lblc = [0]
def producer():
    L('L_producer')
    stamp_idx[0] = 0
    E(f'v_mov_b32 v{P_LN}, v0')
    E(f's_sub_u32 s{S_T0}, s{S_WV}, 4')
    E(f's_and_b32 s{S_H}, s{S_T0}, 1')
    E(f's_lshr_b32 s{S_RS}, s{S_T0}, 1')
    E(f's_mul_i32 s{S_T1}, s{S_PART}, {OPT["rotp"]}')
    E(f's_mul_i32 s{S_T2}, s{S_STRIP}, {OPT["rots"]}')
    E(f's_add_u32 s{S_T1}, s{S_T1}, s{S_T2}')
    rm = OPT['rotm']
    E(f's_mul_i32 s{S_T2}, s{S_T1}, {-(-65536 // rm)}')
    E(f's_lshr_b32 s{S_T2}, s{S_T2}, 16')
    E(f's_mul_i32 s{S_T2}, s{S_T2}, {rm}')
    E(f's_sub_u32 s{S_T1}, s{S_T1}, s{S_T2}')
    if OPT['rotk'] != 1: E(f's_mul_i32 s{S_T1}, s{S_T1}, {OPT["rotk"]}')
    assert (rm - 1) * OPT['rotk'] <= 8
    E(f's_add_u32 s{S_XB}, s{S_RB0}, s{S_RS}')
    E(f's_mul_i32 s{S_XB}, s{S_XB}, {XRB}')
    E(f's_cmp_lt_u32 s{S_PART}, 2')
    E(f's_cselect_b32 s{S_NRB}, 1, 0')
    E(f's_cmp_eq_u32 s{S_RS}, 0')
    E(f's_cselect_b32 s{S_NRB}, s{S_NRB}, 0')
    E(f's_lshl_b32 s{S_T2}, s{S_T1}, 7')
    E(f's_add_u32 s{S_XK}, s{S_XB}, s{S_T2}')
    E(f's_mul_i32 s{S_WK}, s{S_T1}, {64*QROW}')
    E(f's_lshl_b32 s{S_T2}, s{S_T0}, 4')
    E(f's_mul_i32 s{S_T2}, s{S_T2}, {QROW}')
    E(f's_lshl_b32 s{S_T3}, s{S_STRIP}, 9')
    E(f's_add_u32 s{S_T2}, s{S_T2}, s{S_T3}')
    E(f'v_lshrrev_b32 v1, 5, v{P_LN}')
    E(f'v_mul_u32_u24 v2, {8*QROW}, v1')
    E(f'v_and_b32 v3, 31, v{P_LN}')
    E('v_lshl_add_u32 v2, v3, 4, v2')
    E(f'v_add_u32 v{V_QV}, s{S_T2}, v2')
    for jj in range(8):
        E(f's_mov_b32 s{S_JJ+jj}, {jj*QROW}')
    E(f'v_lshrrev_b32 v4, 3, v{P_LN}')
    E(f's_lshl_b32 s{S_T3}, s{S_H}, 3')
    E(f'v_add_u32 v4, s{S_T3}, v4')
    E('v_lshrrev_b32 v5, 1, v4')
    E(f'v_and_b32 v6, 7, v{P_LN}')
    E('v_xor_b32 v5, v5, v6')
    E('v_lshlrev_b32 v5, 4, v5')
    E(f'v_mul_u32_u24 v4, {K*2}, v4')
    E(f'v_add_u32 v{V_XV}, v4, v5')
    E(f's_lshl_b32 s{S_XL}, s{S_H}, 10')
    E(f's_lshl_b32 s{S_T3}, s{S_RS}, 11')
    E(f's_add_u32 s{S_XL}, s{S_XL}, s{S_T3}')
    E(f's_lshl_b32 s{S_XL2}, s{S_H}, 10')
    E(f's_add_u32 s{S_XL2}, s{S_XL2}, {XSH}')
    E(f'v_add_u32 v{V_QC}, s{S_WK}, v{V_QV}')
    E('s_waitcnt lgkmcnt(0)')
    if OPT['pst']: stamp('p', True)
    srd(S_Q, 6, K * N * 4)

    vm = []
    def opsW(t):
        b = V_Q + 32 * (t % 3)
        g = []
        if OPT['now'] and t > 1: return g
        for jj in range(8):
            pre = []
            if jj == 0 and t > 0: pre = [f'v_add_u32 v{V_QC}, s{S_WK+t}, v{V_QV}']
            g.append((pre + [f'buffer_load_dwordx4 v[{b+4*jj}:{b+4*jj+3}], v{V_QC}, s[{S_Q}:{S_Q+3}], s{S_JJ+jj} offen {OPT["qnt"]}'.rstrip()], ('W', t), False))
        return g
    def opsX(t):
        g = []
        if OPT['nox'] and t > 0: return g
        for z in range(9):
            ins = [f's_add_u32 m0, s{S_XL}, {(t % 3) * XSTG + z * 4096}',
                   f's_add_u32 s{S_SOFF}, s{S_XK+t}, {2 * z * XRB}',
                   f'buffer_load_dwordx4 v{V_XV}, s[{S_X}:{S_X+3}], s{S_SOFF} offen lds']
            g.append((ins, ('X', t), False))
        return g
    def opsS(t):
        if OPT['nox'] and t > 0: return []
        lblc[0] += 1
        ins = [f's_cmp_eq_u32 s{S_NRB}, 1', f's_cbranch_scc0 L_sk{lblc[0]}',
               f's_add_u32 m0, s{S_XL2}, {(t & 1) * 2048}',
               f's_add_u32 s{S_SOFF}, s{S_XK+t}, {18 * XRB}',
               f'buffer_load_dwordx4 v{V_XV}, s[{S_X}:{S_X+3}], s{S_SOFF} offen lds',
               f'@L_sk{lblc[0]}']
        return [(ins, ('S', t), True)]
    def opsP(k):
        if not OPT['duty']: return []
        lblc[0] += 1
        ins = [f's_cmp_eq_u32 s{S_DK}, {k}', f's_cbranch_scc0 L_sk{lblc[0]}',
               f'buffer_load_dword v{V_PD}, v{V_PW}, s[{S_Q}:{S_Q+3}], 0 offen {OPT["pfo"]}'.rstrip(),
               f'buffer_load_dword v{V_PD}, v{V_PX}, s[{S_X}:{S_X+3}], 0 offen {OPT["pfo"]}'.rstrip(),
               f'buffer_load_dword v{V_PD}, v{V_PW}, s[{S_Q}:{S_Q+3}], s{S_JJ+2} offen {OPT["pfo"]}'.rstrip(),
               f'buffer_load_dword v{V_PD}, v{V_PX}, s[{S_X}:{S_X+3}], s{S_P64} offen {OPT["pfo"]}'.rstrip(),
               f'@L_sk{lblc[0]}']
        return [(ins, ('P', k), True)]
    def ops(tok):
        return {'W': opsW, 'X': opsX, 'S': opsS, 'P': opsP}[tok[0]](int(tok[1:]))
    def emit_group(g):
        for s_ in g[0]:
            if s_.startswith('@'): L(s_[1:])
            else: E(s_)
        vm.append((g[1], g[2]))
    def vwait(*tags):
        idx = None
        for k, (tg, opt) in enumerate(vm):
            if tg in tags: idx = k
        if idx is None: return
        rest = vm[idx + 1:]
        n = sum(1 for (tg, opt) in rest if not opt)
        E(f's_waitcnt vmcnt({n})')
        del vm[:idx + 1]
    def landed(tag): return all(tg != tag for tg, _ in vm)
    def deq_instrs(t):
        b = V_Q + 32 * (t % 3)
        ins = []
        if OPT['nodeq'] and t > 0: return ins
        for half in range(2):
            es = (2 * half, 2 * half + 1)
            for e in es:
                for d in range(4):
                    lo = b + 4 * (2 * d) + e
                    ins.append(f'v_lshl_add_u32 v{lo}, v{lo}, 6, v{V_LB}')
            for e in es:
                for d in range(4):
                    lo = b + 4 * (2 * d) + e; hi = b + 4 * (2 * d + 1) + e
                    ins.append(f'v_lshl_add_u32 v{lo}, v{hi}, 10, v{lo}')
        rd = []
        for e in range(4):
            for d in range(4):
                lo = b + 4 * (2 * d) + e
                rd.append(f'ds_read_b32 v{b + 4*(2*e+1) + d}, v{lo}')
        if not OPT['nolut']: ins += rd
        if OPT['nowr']: return ins + ['s_waitcnt lgkmcnt(0)']
        for e in range(4):
            r = b + 4 * (2 * e + 1)
            ins.append(f's_waitcnt lgkmcnt({(3 - e) * 4 + e})')
            ins.append(f'ds_write_b128 v{V_WA}, v[{r}:{r+3}] offset:{(t & 1) * 16384 + e * 1024}')
        return ins
    def interleave(groups, ins, per=None):
        n = len(groups)
        if n == 0:
            for s_ in ins: E(s_)
            return
        if per is None: per = OPT['per'] if OPT['per'] else -(-len(ins) // n)
        k = 0
        for g in groups:
            emit_group(g)
            for s_ in ins[k:k+per]: E(s_)
            k += per
        for s_ in ins[k:]: E(s_)

    for g in opsW(0): emit_group(g)
    srd(S_X, 4, M * K * 2)
    for g in opsX(0) + opsS(0): emit_group(g)
    if OPT['pst']: stamp('p', True)
    for t in range(1, 9):
        E(f's_add_u32 s{S_T1}, s{S_T1}, 1')
        E(f's_cmp_eq_u32 s{S_T1}, 9')
        E(f's_cselect_b32 s{S_T1}, 0, s{S_T1}')
        E(f's_lshl_b32 s{S_T2}, s{S_T1}, 7')
        E(f's_add_u32 s{S_XK+t}, s{S_XB}, s{S_T2}')
        E(f's_mul_i32 s{S_WK+t}, s{S_T1}, {64*QROW}')
    E(f'v_and_b32 v{V_LB}, 31, v{P_LN}')
    T0, T1 = 102, 103
    E(f'v_lshrrev_b32 v{T0}, 4, v{V_LB}')
    E(f'v_and_b32 v{T1}, 15, v{V_LB}')
    E(f'v_lshlrev_b32 v{T1}, 4, v{T1}')
    E(f'v_lshl_add_u32 v{T1}, v{T0}, 12, v{T1}')
    E(f'v_lshrrev_b32 v{T0}, 5, v{P_LN}')
    E(f'v_lshl_add_u32 v{T1}, v{T0}, 8, v{T1}')
    E(f's_lshl_b32 s{S_T3}, s{S_H}, 9')
    E(f's_lshl_b32 s{S_T2}, s{S_RS}, 13')
    E(f's_add_u32 s{S_T3}, s{S_T3}, s{S_T2}')
    E(f's_add_u32 s{S_T3}, s{S_T3}, {WST}')
    E(f'v_add_u32 v{V_WA}, s{S_T3}, v{T1}')
    E(f'v_and_b32 v{V_LB}, 15, v{V_LB}')
    E(f'v_lshlrev_b32 v{V_LB}, 2, v{V_LB}')
    E(f'v_add_u32 v{V_LB}, {LUT}, v{V_LB}')
    if OPT['duty']:
        E('s_lshr_b32 s26, s2, 3')
        E(f's_and_b32 s{S_DK}, s26, 7')
        E(f's_add_u32 s{S_DK}, s{S_DK}, 1')
        E('s_lshr_b32 s26, s26, 3')
        E(f's_sub_u32 s27, s{S_WV}, 4')
        E('s_lshl_b32 s28, s26, 9')
        E('s_lshl_b32 s29, s27, 7')
        E('s_add_u32 s28, s28, s29')
        E(f'v_add_u32 v{V_PX}, s28, v{P_LN}')
        E(f'v_mul_u32_u24 v{V_PX}, {K*2}, v{V_PX}')
        E(f's_lshl_b32 s28, s{S_DK}, 7')
        E(f'v_add_u32 v{V_PX}, s28, v{V_PX}')
        E(f's_mov_b32 s{S_P64}, {64*K*2}')
        E('s_and_b32 s28, s2, 7')
        E('s_lshl_b32 s28, s28, 5')
        E('s_mul_i32 s29, s28, 293')
        E('s_lshr_b32 s29, s29, 11')
        E('s_add_u32 s28, s28, 31')
        E('s_mul_i32 s28, s28, 293')
        E('s_lshr_b32 s28, s28, 11')
        E('s_min_u32 s28, s28, 35')
        E('s_sub_u32 s28, s28, s29')
        E('s_lshl_b32 s28, s28, 2')
        E('s_add_u32 s28, s28, 3')
        E(f'v_and_b32 v{V_PW}, 31, v{P_LN}')
        E(f'v_min_u32 v{V_PW}, s28, v{V_PW}')
        E(f'v_lshlrev_b32 v{V_PW}, 7, v{V_PW}')
        E('s_lshl_b32 s29, s29, 9')
        E(f's_lshl_b32 s28, s{S_DK}, 6')
        E('s_lshl_b32 s26, s26, 4')
        E('s_add_u32 s28, s28, s26')
        E('s_lshl_b32 s27, s27, 2')
        E('s_add_u32 s28, s28, s27')
        E(f's_mul_i32 s28, s28, {QROW}')
        E('s_add_u32 s28, s28, s29')
        E(f'v_lshrrev_b32 v{V_PD}, 5, v{P_LN}')
        E(f'v_mul_u32_u24 v{V_PD}, {QROW}, v{V_PD}')
        E(f'v_add3_u32 v{V_PW}, v{V_PW}, v{V_PD}, s28')
        for tok in OPT['pre1'].replace('_', ' ').split():
            for g in ops(tok): emit_group(g)
    if OPT['pprio']: E(f's_setprio {OPT["pprio"]}')
    stamp('p')
    E('s_barrier')
    vwait(('W', 0))
    stamp('p')
    g1 = opsW(1)
    for tok in OPT['pre2'].replace('_', ' ').split(): g1 += ops(tok)
    interleave(g1, deq_instrs(0), per=7)
    vwait(('X', 0), ('S', 0))
    E('s_waitcnt lgkmcnt(0)')
    stamp('p')
    E('s_barrier')
    stamp('p')
    sched = [r.split() for r in OPT['sched'].replace('_', ' ').split(';')]
    for r in range(0, 8):
        toks = sched[r]
        k = toks.index('D')
        for tok in toks[:k]:
            for g in ops(tok): emit_group(g)
        vwait(('W', r + 1))
        gs = []
        for tok in toks[k+1:]: gs += ops(tok)
        interleave(gs, deq_instrs(r + 1), per=(OPT['per'] or max(4, -(-56 // max(1, len(gs))))))
        if OPT['cst']: stamp('p')
        vwait(('X', r + 1), ('S', r + 1))
        E('s_waitcnt lgkmcnt(0)')
        if OPT['cst']: stamp('p')
        E('s_barrier')
        if OPT['cst'] or r in (0, 1, 2, 7): stamp('p')
    if OPT['stamps']:
        stamp('p')
        dump_stamps(1)
    rep_tail(P_LN)
    E('s_endpgm')

header()
prologue()
consumer()
producer()
L('L_end')
E('s_endpgm')
footer()
print('\n'.join(out))
```
